```python
import torch

def _softmax(x, axis=-1):
    return torch.softmax(x, dim=axis)
def _gelu(x):
    return torch.nn.functional.gelu(x, approximate="tanh")
def _silu(x):
    return torch.nn.functional.silu(x)
def _sigmoid(x):
    return torch.sigmoid(x)
def _layernorm(x, axis=-1, eps=1e-5):
    m = x.mean(dim=axis, keepdim=True)
    v = x.var(dim=axis, keepdim=True, unbiased=False)
    return (x - m) / torch.sqrt(v + eps)
def _scatter_add(tgt, idx, src, axis=0):
    return tgt.clone().index_add_(axis, idx, src)
def _segment_sum(src, seg, n):
    out = torch.zeros((n,) + src.shape[1:], dtype=src.dtype)
    return out.index_add_(0, seg, src)
def _pad(x, pw):
    flat = tuple(v for pair in reversed(pw) for v in pair)
    return torch.nn.functional.pad(x, flat)

kernel_name = 'concat_heads__ssm_conv_s4d__compressed_kv_cla__prompt'

def setup_inputs():

    _w = (lambda a: (lambda t: t.to(torch.bfloat16) if t.is_floating_point() else t)(torch.as_tensor(a)))
    def _A_setup():
        Bsz, L, D, N = 1, 2048, 512, 128
        return {
            "u": _w((lambda *s: torch.randn(*s, dtype=torch.bfloat16) * 0.05)(Bsz, L, D)),
            "log_A_real": _w((lambda *s: torch.randn(*s, dtype=torch.bfloat16) * 6.4)(D, N) * 0.5),
            "A_imag": _w((lambda *s: torch.randn(*s, dtype=torch.bfloat16) * 0.05)(D, N) * 3.14),
            "C_real": _w((lambda *s: torch.randn(*s, dtype=torch.bfloat16) * 0.05)(D, N) / N ** 0.5),
            "C_imag": _w((lambda *s: torch.randn(*s, dtype=torch.bfloat16) * 0.05)(D, N) / N ** 0.5),
            "log_dt": _w((lambda *s: torch.randn(*s, dtype=torch.bfloat16) * 0.05)(D) * 0.5 - 4.0),
            "D_skip": _w((lambda *s: torch.randn(*s, dtype=torch.bfloat16) * 0.05)(D)),
        }
    _A_in = _A_setup()

    def _B_setup():
        B, H, Sq, Sk, D, M = 1, 32, 2048, 2048, 128, 512
        Dc = 4 * D
        return {
            "x": _w((lambda *s: torch.randn(*s, dtype=torch.bfloat16) * 0.8)(B, Sq, M)),
            "c_kv": _w((lambda *s: torch.randn(*s, dtype=torch.bfloat16) * 0.2)(B, Sk, Dc)),
            "w_q": _w((lambda *s: torch.randn(*s, dtype=torch.bfloat16) * 3.2)(M, H, D) * (M ** -0.5)),
            "w_uk": _w((lambda *s: torch.randn(*s, dtype=torch.bfloat16) * 3.2)(Dc, H, D) * (Dc ** -0.5)),
            "w_uv": _w((lambda *s: torch.randn(*s, dtype=torch.bfloat16) * 0.2)(Dc, H, D) * (Dc ** -0.5)),
            "w_o": _w((lambda *s: torch.randn(*s, dtype=torch.bfloat16) * 0.2)(H, D, M) * ((H * D) ** -0.5)),
        }
    _B_in = _B_setup()

    return {
        "A_u": _A_in["u"],
        "A_log_A_real": _A_in["log_A_real"],
        "A_A_imag": _A_in["A_imag"],
        "A_C_real": _A_in["C_real"],
        "A_C_imag": _A_in["C_imag"],
        "A_log_dt": _A_in["log_dt"],
        "A_D_skip": _A_in["D_skip"],
        "B_x": _B_in["x"],
        "B_c_kv": _B_in["c_kv"],
        "B_w_q": _B_in["w_q"],
        "B_w_uk": _B_in["w_uk"],
        "B_w_uv": _B_in["w_uv"],
        "B_w_o": _B_in["w_o"],
    }

def reference(A_u, A_log_A_real, A_A_imag, A_C_real, A_C_imag, A_log_dt, A_D_skip, B_x, B_c_kv, B_w_q, B_w_uk, B_w_uv, B_w_o):
    def _A_ref(u, log_A_real, A_imag, C_real, C_imag, log_dt, D_skip):
        L = u.shape[1]
        dt = torch.exp(log_dt)
        A = -torch.exp(log_A_real) + 1j * A_imag
        C = (C_real + 1j * C_imag) * dt[:, None]
        pos = (lambda x, dt: x.to(dt))(torch.arange(L), log_dt.dtype)
        P = torch.exp((A * dt[:, None])[:, :, None] * pos[None, None, :])
        K = 2.0 * torch.einsum("dn,dnl->dl", C, P).real
        L2 = 2 * L
        u_t = (lambda x, *d: x.permute(*d))(u, 0, 2, 1)
        Kf = (lambda x, *a, **k: torch.fft.rfft(x.float(), *a, **k))(K, L2)
        Uf = (lambda x, *a, **k: torch.fft.rfft(x.float(), *a, **k))(u_t, L2)
        y = (lambda x, *a, **k: torch.fft.irfft(x, *a, **k).to(torch.bfloat16))(Uf * Kf[None, :, :], L2)[:, :, :L]
        y = (lambda x, *d: x.permute(*d))(y, 0, 2, 1)
        return y + u * D_skip[None, None, :]

    def _B_ref(x, c_kv, w_q, w_uk, w_uv, w_o):
        B, Sq, M = x.shape[0], x.shape[1], x.shape[2]
        Sk = c_kv.shape[1]
        H, D = w_q.shape[1], w_q.shape[2]
        q = torch.einsum("bqm,mhd->bhqd", x, w_q)
        k = torch.einsum("bkc,chd->bhkd", c_kv, w_uk)
        v = torch.einsum("bkc,chd->bhkd", c_kv, w_uv)
        scores = torch.einsum("bhqd,bhkd->bhqk", q, k) * (D ** -0.5)
        off = Sk - Sq
        qi = torch.arange(Sq)[:, None]
        kj = torch.arange(Sk)[None, :]
        cmask = kj <= (qi + off)
        scores = torch.where(cmask[None, None], scores, -1e9)
        p = _softmax(scores, axis=-1)
        ctx = torch.einsum("bhqk,bhkd->bhqd", p, v)
        return torch.einsum("bhqd,hdm->bqm", ctx, w_o)

    a = _A_ref(A_u, A_log_A_real, A_A_imag, A_C_real, A_C_imag, A_log_dt, A_D_skip)
    b = _B_ref(B_x, B_c_kv, B_w_q, B_w_uk, B_w_uv, B_w_o)
    return torch.concatenate([a, b], axis=-1)
```

```python
from dsl import *
MB = 1 << 20
KF_OFF = 0
VF_OFF = 16 * MB
XF_OFF = 32 * MB
CTX_OFF = 36 * MB
WS_BYTES = 268435456
ARG = dict(u=0, logA=8, Aim=16, Cre=24, Cim=32, logdt=40, Dskip=48, x=56, ckv=64, wq=72, wuk=80, wuv=88, wo=96, out=104, dbg=112, ws=120)

def kernel_header(A, name):
    A.raw(f".globl {name}"); A.raw(".p2align 8"); A.raw(f".type {name},@function"); A.label(name)
    A.clear_state()

def descriptor(name, vgpr, sgpr=102, accum=None):
    accum = accum or ((vgpr + 3) // 4 * 4)
    return f""".amdhsa_kernel {name}
  .amdhsa_next_free_vgpr {vgpr}
  .amdhsa_next_free_sgpr {sgpr}
  .amdhsa_accum_offset {accum}
  .amdhsa_group_segment_fixed_size 0
  .amdhsa_kernarg_size 128
  .amdhsa_user_sgpr_count 2
  .amdhsa_user_sgpr_kernarg_segment_ptr 1
  .amdhsa_system_sgpr_workgroup_id_x 1
.end_amdhsa_kernel
"""

def mk_srd(A, sd, sp, nbytes):
    A(f"s_mov_b32 {s(sd)}, {s(sp)}")
    A(f"s_mov_b32 {s(sd+1)}, {s(sp+1)}")
    A(f"s_mov_b32 {s(sd+2)}, {hex(nbytes)}")
    A(f"s_mov_b32 {s(sd+3)}, 0x00020000")

class Stream:
    def __init__(self, A, ring_base, nbuf, lookahead):
        self.A = A; self.rb = ring_base; self.nbuf = nbuf; self.la = lookahead
        self.uses = []
        self.issued = 0; self.done = 0
    def add(self, reads, mfma, pre=None, post=None):
        self.uses.append(dict(reads=reads, mfma=mfma, pre=pre or [], post=post or []))
    def buf(self, i): return self.rb + 4 * (i % self.nbuf)
    def issue_upto(self, n):
        n = min(n, len(self.uses))
        while self.issued < n:
            u = self.uses[self.issued]
            for t in u["reads"](self.buf(self.issued)): self.A(t)
            self.issued += 1
    def run(self, count, fillers=()):
        fillers = list(fillers); nf = len(fillers); fi = 0
        for j in range(count):
            i = self.done
            self.issue_upto(i + 1)
            u = self.uses[i]
            for t in u["pre"]: self.A(t)
            self.A(u["mfma"](self.buf(i)))
            self.done += 1
            self.issue_upto(i + 1 + self.la)
            for t in u["post"]: self.A(t)
            want = (nf * (j + 1) + count - 1) // count
            while fi < want:
                self.A(fillers[fi]); fi += 1
        while fi < nf:
            self.A(fillers[fi]); fi += 1
```

```python
import re
from collections import deque

def v(i, n=1): return f"v{i}" if n == 1 else f"v[{i}:{i+n-1}]"
def s(i, n=1): return f"s{i}" if n == 1 else f"s[{i}:{i+n-1}]"
def a(i, n=1): return f"a{i}" if n == 1 else f"a[{i}:{i+n-1}]"

_REG = re.compile(r"^(-|\|)?(abs\()?([vsa])(?:(\d+)|\[(\d+):(\d+)\])\)?\|?$")
TRANS = ("v_exp_f32", "v_log_f32", "v_rcp_f32", "v_rsq_f32", "v_sqrt_f32", "v_sin_f32", "v_cos_f32", "v_rcp_iflag_f32")

def regs_of(tok):
    tok = tok.strip()
    if tok in ("vcc",): return [("s", 106), ("s", 107)]
    if tok == "vcc_lo": return [("s", 106)]
    if tok == "vcc_hi": return [("s", 107)]
    if tok == "exec": return [("s", 126), ("s", 127)]
    if tok == "exec_lo": return [("s", 126)]
    if tok == "exec_hi": return [("s", 127)]
    if tok == "m0": return [("s", 124)]
    m = _REG.match(tok)
    if not m: return []
    k = m.group(3)
    if m.group(4) is not None: return [(k, int(m.group(4)))]
    return [(k, i) for i in range(int(m.group(5)), int(m.group(6)) + 1)]

def split_ops(rest):
    out, depth, cur = [], 0, ""
    for ch in rest:
        if ch == "[": depth += 1
        if ch == "]": depth -= 1
        if ch == "," and depth == 0:
            out.append(cur.strip()); cur = ""
        else: cur += ch
    if cur.strip(): out.append(cur.strip())
    return out

class Inst:
    __slots__ = ("text", "op", "dst", "src", "kind", "srcA", "srcB", "srcC", "passes", "target", "states", "data", "tag", "nopfix")
    def __init__(self, text):
        self.text = text; self.dst = []; self.src = []; self.srcA = self.srcB = self.srcC = []
        self.passes = 0; self.target = None; self.states = 1; self.data = []; self.tag = None; self.nopfix = False
        t = text.split(";")[0].strip()
        if t.endswith(":"):
            self.kind = "label"; self.op = t[:-1]; self.states = 0; return
        if t.startswith(".") or not t:
            self.kind = "dir"; self.op = t; self.states = 0; return
        parts = t.split(None, 1)
        op = parts[0]; self.op = op
        rest = parts[1] if len(parts) > 1 else ""
        ops = split_ops(rest)
        mods = []
        if ops:
            last = ops[-1].split()
            ops[-1] = last[0]; mods = last[1:]
        R = [regs_of(o) for o in ops]
        flat = lambda L: [x for l in L for x in l]
        if op.startswith("v_mfma"):
            self.kind = "mfma"; self.dst = R[0]; self.srcA, self.srcB, self.srcC = R[1], R[2], R[3]
            self.src = flat(R[1:])
            if "32x32x16" in op or "32x32x8" in op: self.passes = 8
            elif "16x16x32" in op or "16x16x16" in op: self.passes = 4
            elif "4x4x4" in op: self.passes = 2
            elif "16x16x4_f32" in op: self.passes = 8
            else: raise ValueError("mfma passes? " + op)
        elif op.startswith("v_cmp"):
            self.kind = "valu"; self.dst = R[0]; self.src = flat(R[1:])
            if op.startswith("v_cmpx"): self.dst = self.dst + regs_of("exec")
        elif op.startswith("v_permlane") and "swap" in op:
            self.kind = "valu"; self.dst = flat(R); self.src = flat(R)
        elif op in ("v_add_co_u32", "v_sub_co_u32", "v_subrev_co_u32"):
            self.kind = "valu"; self.dst = R[0] + R[1]; self.src = flat(R[2:])
        elif op in ("v_addc_co_u32", "v_subb_co_u32"):
            self.kind = "valu"; self.dst = R[0] + R[1]; self.src = flat(R[2:])
        elif op == "v_nop":
            self.kind = "valu"
        elif op.startswith("v_"):
            self.kind = "trans" if op.replace("_e32", "").replace("_e64", "") in TRANS else "valu"
            self.dst = R[0]; self.src = flat(R[1:])
            if op.startswith("v_fmac") or op.startswith("v_pk_fmac") or op.startswith("v_dot2c") or op.startswith("v_writelane") : self.src = self.src + R[0]
            if any(m.startswith("dst_unused:UNUSED_PRESERVE") or m.startswith("op_sel") for m in mods): self.src = self.src + R[0]
        elif op.startswith("ds_read") or op.startswith("ds_bpermute") or op.startswith("ds_permute") or op.startswith("ds_swizzle"):
            self.kind = "ds_read"; self.dst = R[0]; self.src = flat(R[1:])
            if "d16" in op: self.src = self.src + R[0]
        elif op.startswith("ds_write") or op.startswith("ds_add") or op.startswith("ds_max"):
            self.kind = "ds_write"; self.src = flat(R)
        elif op.startswith("buffer_load") or op.startswith("global_load"):
            if "lds" in mods or "_lds_" in op:
                self.kind = "dma"; self.src = flat(R) + regs_of("m0")
            else:
                self.kind = "vload"; self.dst = R[0]; self.src = flat(R[1:])
                if "d16" in op: self.src = self.src + R[0]
        elif op.startswith("buffer_store"):
            self.kind = "vstore"; self.src = flat(R); self.data = R[0] if ("x3" in op or "x4" in op) else []
        elif op.startswith("global_store"):
            self.kind = "vstore"; self.src = flat(R); self.data = R[1] if ("x3" in op or "x4" in op) else []
        elif op.startswith("buffer_atomic") or op.startswith("global_atomic"):
            self.kind = "vstore"; self.src = flat(R)
            if "sc0" in mods: self.kind = "vload"; self.dst = R[0]
        elif op in ("buffer_wbl2", "buffer_inv"):
            self.kind = "vstore"
        elif op.startswith("s_load") or op.startswith("s_buffer_load") or op in ("s_memtime", "s_memrealtime"):
            self.kind = "smem"; self.dst = R[0]; self.src = flat(R[1:])
        elif op == "s_waitcnt":
            self.kind = "wait"
        elif op == "s_nop":
            self.kind = "nop"; self.states = int(ops[0], 0) + 1
        elif op == "s_barrier":
            self.kind = "barrier"
        elif op == "s_endpgm":
            self.kind = "end"
        elif op == "s_branch":
            self.kind = "branch"; self.target = ops[0]
        elif op.startswith("s_cbranch"):
            self.kind = "cbranch"; self.target = ops[0]
            if "vcc" in op: self.src = regs_of("vcc")
        elif op.startswith("s_cmp") or op.startswith("s_bitcmp"):
            self.kind = "salu"; self.src = flat(R)
        elif op in ("s_setprio", "s_sleep", "s_setreg_imm32_b32", "s_sethalt"):
            self.kind = "salu"
        elif op.startswith("s_") :
            self.kind = "salu"; self.dst = R[0] if R else []; self.src = flat(R[1:])
            if "saveexec" in op: self.dst = self.dst + regs_of("exec"); self.src = self.src + regs_of("exec")
            if op in ("s_addk_i32", "s_mulk_i32"): self.src = self.src + R[0]
        else:
            raise ValueError("unknown instruction: " + text)

    def waits(self):
        vm = re.search(r"vmcnt\((\d+)\)", self.text); lg = re.search(r"lgkmcnt\((\d+)\)", self.text)
        return (int(vm.group(1)) if vm else None, int(lg.group(1)) if lg else None)

XDL_AB = {2: 5, 4: 8, 8: 12, 16: 20}
XDL_C = {2: 4, 4: 6, 8: 10, 16: 18}
XDL_WAR = {2: 1, 4: 3, 8: 7, 16: 15}

def need_states(p, c):
    n = 0
    pv = p.kind in ("valu", "trans"); cv = c.kind in ("valu", "trans")
    pd = set(p.dst)
    if pv:
        vd = {r for r in pd if r[0] in "va"}; sd = {r for r in pd if r[0] == "s"}
        if c.kind == "mfma" and vd & set(c.src): n = max(n, 2)
        if p.kind == "trans" and c.kind == "valu" and vd & set(c.src): n = max(n, 1)
        if c.op.startswith("v_readfirstlane") or c.op.startswith("v_readlane"):
            if vd & set(c.src): n = max(n, 1)
            if sd & set(c.src): n = max(n, 4)
        if c.op.startswith("v_permlane") and vd & set(c.src): n = max(n, 2)
        if "dpp" in c.text or "row_" in c.text or "quad_perm" in c.text:
            if cv and vd & set(c.src): n = max(n, 2)
        if sd:
            if cv:
                srcs = set(c.src)
                if c.op.startswith("v_cndmask") and not c.text.count("s[") and "vcc" in c.text: srcs |= set(regs_of("vcc"))
                if sd & srcs: n = max(n, 2)
            if c.kind in ("vload", "vstore", "dma") and sd & set(c.src): n = max(n, 5)
            if ("s", 126) in sd:
                if c.kind == "mfma": n = max(n, 4)
                if c.op.startswith("v_permlane") or c.op.startswith("v_read"): n = max(n, 4)
        if ("op_sel" in p.text or "sdwa" in p.text or "dst_sel" in p.text) and cv and vd & (set(c.src) | set(c.dst)): n = max(n, 1)
    if p.kind == "mfma":
        ps = p.passes
        if c.kind == "mfma":
            if pd & (set(c.srcA) | set(c.srcB)): n = max(n, XDL_AB[ps])
            if pd & set(c.srcC):
                if c.srcC == p.dst and c.passes == ps: n = max(n, 2 if ps == 2 else 0)
                else: n = max(n, XDL_C[ps])
            elif pd & set(c.dst): n = max(n, XDL_C[ps])
        elif cv:
            if pd & (set(c.src) | set(c.dst)): n = max(n, XDL_AB[ps])
            if set(p.srcC) & set(c.dst): n = max(n, XDL_WAR[ps])
        elif c.kind in ("vload", "vstore", "dma", "ds_read", "ds_write"):
            if pd & (set(c.src) | set(c.dst)): n = max(n, XDL_AB[ps])
            if set(p.srcC) & set(c.dst): n = max(n, XDL_WAR[ps])
    if p.kind == "vstore" and p.data:
        if set(p.data) & set(c.dst): n = max(n, 2 if cv or c.kind == "mfma" else 1)
    if p.kind == "salu" and ("s", 124) in pd and c.kind == "dma": n = max(n, 1)
    return n

class Asm:
    def __init__(self):
        self.ins = []
        self.lq = []
        self.vq = []
        self.auto = True
        self.nlabel = 0
        self.curtag = None
    def raw(self, text):
        self.ins.append(Inst(text)); return self.ins[-1]
    def label(self, name): self.raw(name + ":")
    def newlabel(self, p="L"):
        self.nlabel += 1; return f"{p}_{self.nlabel}"
    def _autowait(self, i):
        touched = set(i.src) | set(i.dst)
        nl = None; nv = None
        for k, d in enumerate(self.lq):
            if d and d & touched: nl = len(self.lq) - 1 - k
        for k, d in enumerate(self.vq):
            if d and d & touched: nv = len(self.vq) - 1 - k
        if nl is not None or nv is not None: self.wait(vm=nv, lgkm=nl)
    def wait(self, vm=None, lgkm=None):
        parts = []
        if vm is not None:
            vm = min(vm, 63); parts.append(f"vmcnt({vm})")
            if len(self.vq) > vm: self.vq = self.vq[len(self.vq) - vm:] if vm else []
        if lgkm is not None:
            if any(isinstance(d, _Smem) for d in self.lq): lgkm = 0
            lgkm = min(lgkm, 15); parts.append(f"lgkmcnt({lgkm})")
            if len(self.lq) > lgkm: self.lq = self.lq[len(self.lq) - lgkm:] if lgkm else []
        self.raw("s_waitcnt " + " ".join(parts))
    def __call__(self, text):
        for line in text.split("\n"):
            line = line.strip()
            if not line: continue
            if line.startswith("@waittag"):
                self.wait_tag(line.split()[1]); continue
            if line.startswith("@tag"):
                self.curtag = line.split()[1] if len(line.split()) > 1 else None; continue
            i = Inst(line)
            if i.kind == "wait":
                vm, lg = i.waits(); self.wait(vm, lg); continue
            if self.auto and i.kind not in ("label", "dir"): self._autowait(i)
            self.ins.append(i)
            if i.kind in ("ds_read",): self.lq.append(frozenset(i.dst))
            elif i.kind == "ds_write": self.lq.append(frozenset())
            elif i.kind == "smem": self.smem_pending(i)
            elif i.kind == "vload": self.vq.append(_Tag(i.dst, self.curtag))
            elif i.kind in ("vstore", "dma"): self.vq.append(_Tag((), self.curtag))
    def wait_tag(self, tag):
        n = None
        for k, d in enumerate(self.vq):
            if d.tag == tag: n = len(self.vq) - 1 - k
        if n is not None: self.wait(vm=n)
    def smem_pending(self, i):
        self.lq.append(_Smem(i.dst))
    def state(self): return (list(self.lq), list(self.vq))
    def set_state(self, st): self.lq, self.vq = list(st[0]), list(st[1])
    def clear_state(self): self.lq, self.vq = [], []
    def text(self): return "\n".join(("" if i.kind in ("label", "dir") else "    ") + i.text for i in self.ins) + "\n"

class _Smem(frozenset):
    pass

class _Tag(frozenset):
    def __new__(cls, regs, tag):
        o = super().__new__(cls, regs); o.tag = tag; return o

def _patch_wait_for_smem():
    pass

def build_cfg(ins):
    lab = {i.op: k for k, i in enumerate(ins) if i.kind == "label"}
    succ = [[] for _ in ins]; pred = [[] for _ in ins]
    for k, i in enumerate(ins):
        nx = []
        if i.kind == "end": pass
        elif i.kind == "branch": nx = [lab[i.target]]
        elif i.kind == "cbranch": nx = [lab[i.target]] + ([k + 1] if k + 1 < len(ins) else [])
        elif k + 1 < len(ins): nx = [k + 1]
        succ[k] = nx
        for n in nx: pred[n].append(k)
    return succ, pred

def fix_hazards(ins, verbose=True, maxwin=20):
    total = 0
    while True:
        succ, pred = build_cfg(ins)
        fixes = {}
        for k, c in enumerate(ins):
            if c.kind in ("label", "dir", "nop", "wait", "barrier", "end", "branch"): continue
            stack = [(p, 0) for p in pred[k]]; seen = {}
            worst = 0
            while stack:
                j, d = stack.pop()
                if j in seen and seen[j] <= d: continue
                seen[j] = d
                p = ins[j]
                if p.kind not in ("label", "dir", "nop", "wait", "barrier", "branch", "cbranch"):
                    n = need_states(p, c)
                    if n > d: worst = max(worst, n - d)
                d2 = d + p.states
                if d2 < maxwin:
                    for q in pred[j]: stack.append((q, d2))
            if worst: fixes[k] = worst
        if not fixes: break
        last = -10**9
        for k in sorted(fixes):
            if k - last < maxwin + 4: del fixes[k]
            else: last = k
        out = []
        for k, i in enumerate(ins):
            if k in fixes:
                n = fixes[k]
                while n > 0:
                    m = min(n, 16); x = Inst(f"s_nop {m-1}"); x.nopfix = True; out.append(x); n -= m
                total += 1
                if verbose: print(f"  [hazard] s_nop x{fixes[k]} before: {i.text}")
            out.append(i)
        ins = out
    return ins

def check_waits(ins, entry_labels):
    succ, pred = build_cfg(ins)
    lab = {i.op: k for k, i in enumerate(ins) if i.kind == "label"}
    seen = {}
    work = deque()
    for e in entry_labels: work.append((lab[e], (), ()))
    errs = set(); nstates = 0
    while work:
        k, lq, vq = work.popleft()
        while True:
            i = ins[k]
            if i.kind == "label" or len(pred[k]) > 1:
                key = (lq, vq)
                st = seen.setdefault(k, set())
                if key in st: break
                st.add(key); nstates += 1
                if len(st) > 400: errs.add(f"too many states at {k} {i.text}"); break
            if i.kind == "wait":
                vm, lg = i.waits()
                if vm is not None and len(vq) > vm: vq = vq[len(vq) - vm:] if vm else ()
                if lg is not None:
                    if any(x[0] == "S" for x in lq):
                        if lg == 0: lq = ()
                    elif len(lq) > lg: lq = lq[len(lq) - lg:] if lg else ()
            elif i.kind not in ("label", "dir"):
                touched = set(i.src) | set(i.dst)
                for x in lq:
                    if set(x[1]) & touched: errs.add(f"LGKM not waited: [{k}] {i.text}")
                for x in vq:
                    if set(x[1]) & touched: errs.add(f"VM not waited: [{k}] {i.text}")
                if i.kind == "ds_read": lq = lq + (("L", tuple(i.dst)),)
                elif i.kind == "ds_write": lq = lq + (("L", ()),)
                elif i.kind == "smem": lq = lq + (("S", tuple(i.dst)),)
                elif i.kind == "vload": vq = vq + (("V", tuple(i.dst)),)
                elif i.kind in ("vstore", "dma"): vq = vq + (("V", ()),)
                if len(vq) > 63: vq = vq[-63:]
                if len(lq) > 40: lq = lq[-40:]
                while vq and not vq[0][1]: vq = vq[1:]
                while lq and not lq[0][1] and lq[0][0] == "L": lq = lq[1:]
            nx = succ[k]
            if not nx: break
            for n in nx[1:]: work.append((n, lq, vq))
            k = nx[0]
    return sorted(errs)
```

```python
from common import *

SLOT = 32768
NSLOT = 3
WSCR = NSLOT * SLOT
K1_LDS = WSCR + 65536

CHUNKS = [[(0, q), (1, q), (2, q), (3, q)] for q in range(4)] + \
         [[(4, 0), (5, 0), (4, 1), (5, 1)], [(4, 2), (5, 2), (4, 3), (5, 3)]] + \
         [[(6, q) for q in range(4)], [(7, q) for q in range(4)]]
ACCSET = {0: 0, 1: 1, 2: 2, 3: 3, 4: 0, 5: 1, 6: 2, 7: 3}
MF = "v_mfma_f32_16x16x32_bf16"

def gen_k1(A, name="k1_kernel", opt=()):
    kernel_header(A, name)
    W = 0
    ACC = 128
    RING = 192
    OST = 224
    vL16 = 232; vRD = 233; vRA = [234, 235]; vWG = 236; vWT = 238; vXG = 239; vXR = 240; vT = 241; vT2 = 242
    vDM = [243, 244, 245, 246]
    XFR = 248
    sW = 24; sTMP = 25; sCK = 26; sOUT = 27; sM0 = 28; sPART = 29; sR = 30; sH = 31; sWOFF = 32; sXO = 33; sG = 34; sWM = 35
    sCA = 52; sCB = 53; sCC = 54
    Ldone = name + "_done"
    nst = [0]
    def stamp():
        if "stamp" not in opt: return
        A(f"s_memtime s[{64+2*nst[0]}:{65+2*nst[0]}]"); A("s_waitcnt lgkmcnt(0)"); nst[0] += 1
    def dump_stamps():
        if "stamp" not in opt: return
        A("s_memrealtime s[60:61]"); A("s_waitcnt lgkmcnt(0)")
        A(f"s_sub_u32 s60, s60, s62")
        for i in range(nst[0]):
            A(f"v_writelane_b32 {v(vT)}, s{64+2*i}, {i}")
        A(f"v_writelane_b32 {v(vT)}, s60, 15")
        A("s_lshl_b32 s48, s2, 3"); A(f"s_add_u32 s48, s48, {s(sW)}"); A("s_lshl_b32 s48, s48, 8"); A(f"s_add_u32 s48, s48, {128*MB}")
        A(f"v_lshrrev_b32 {v(vT2)}, 2, {v(vL16)}")
        A(f"buffer_store_dword {v(vT)}, {v(vT2)}, s[16:19], s48 offen")
    A("s_cmp_ge_u32 s2, 256"); A(f"s_cbranch_scc1 {Ldone}")
    A(f"s_load_dwordx2 s[4:5], s[0:1], {ARG['ckv']}")
    A(f"s_load_dwordx4 s[36:39], s[0:1], {ARG['wuk']}")
    A(f"s_load_dwordx2 s[6:7], s[0:1], {ARG['ws']}")
    A(f"s_load_dwordx2 s[40:41], s[0:1], {ARG['x']}")
    A(f"v_lshrrev_b32 {v(vT)}, 6, v0")
    A(f"v_and_b32 {v(vT2)}, 63, v0")
    A(f"v_readfirstlane_b32 {s(sW)}, {v(vT)}")
    A(f"v_lshlrev_b32 {v(vL16)}, 4, {v(vT2)}")
    A(f"s_and_b32 s42, s2, 7"); A("s_lshr_b32 s43, s2, 3"); A("s_and_b32 s44, s43, 3"); A(f"s_lshr_b32 {s(sR)}, s43, 2")
    A(f"s_lshr_b32 {s(sPART)}, s44, 1")
    A("s_lshl_b32 s45, s42, 2"); A("s_and_b32 s46, s44, 1"); A("s_lshl_b32 s46, s46, 1"); A("s_add_u32 s45, s45, s46")
    A(f"s_lshr_b32 s46, {s(sW)}, 2"); A(f"s_add_u32 {s(sH)}, s45, s46")
    A(f"s_and_b32 s47, {s(sW)}, 3")
    A(f"v_and_b32 {v(vXG)}, 15, {v(vT2)}"); A(f"v_lshlrev_b32 {v(vRD)}, 8, {v(vXG)}")
    A(f"v_lshrrev_b32 {v(vT)}, 4, {v(vT2)}"); A(f"v_xor_b32 {v(vXG)}, {v(vT)}, {v(vXG)}")
    A(f"v_lshl_add_u32 {v(vRD)}, {v(vXG)}, 4, {v(vRD)}")
    A(f"v_lshlrev_b32 {v(vXG)}, 4, {v(vXG)}")
    for j in range(4):
        A(f"v_xor_b32 {v(vDM[j])}, {64*j}, {v(vXG)}")
        A(f"v_lshl_add_u32 {v(vDM[j])}, {v(vT)}, 10, {v(vDM[j])}")
        if j: A(f"v_add_u32 {v(vDM[j])}, {3072*j}, {v(vDM[j])}")
    A(f"v_lshrrev_b32 {v(vT)}, 2, {v(vT2)}"); A(f"v_lshlrev_b32 {v(vWG)}, 13, {v(vT)}")
    A(f"v_lshrrev_b32 {v(vT)}, 5, {v(vT2)}"); A(f"v_lshlrev_b32 {v(vT)}, 1, {v(vT)}")
    A(f"v_and_b32 {v(vXG)}, 3, {v(vT2)}"); A(f"v_xor_b32 {v(vT)}, {v(vT)}, {v(vXG)}")
    A(f"v_lshl_add_u32 {v(vWG)}, {v(vT)}, 4, {v(vWG)}")
    A(f"s_lshl_b32 s48, {s(sH)}, 8"); A("s_lshl_b32 s49, s47, 6"); A("s_add_u32 s48, s48, s49")
    A(f"v_add_u32 {v(vWG)}, s48, {v(vWG)}")
    A(f"s_lshl_b32 {s(sWM)}, {s(sW)}, 13"); A(f"s_add_u32 {s(sWM)}, {s(sWM)}, {WSCR}")
    A(f"v_lshrrev_b32 {v(vT)}, 4, {v(vT2)}"); A(f"v_lshlrev_b32 {v(vWT)}, 9, {v(vT)}")
    A(f"v_bfe_u32 {v(vT)}, {v(vT2)}, 2, 2"); A(f"v_lshl_add_u32 {v(vWT)}, {v(vT)}, 6, {v(vWT)}")
    A(f"v_bfe_u32 {v(vT)}, {v(vT2)}, 4, 1"); A(f"v_lshl_add_u32 {v(vWT)}, {v(vT)}, 5, {v(vWT)}")
    A(f"v_and_b32 {v(vT)}, 3, {v(vT2)}"); A(f"v_lshl_add_u32 {v(vWT)}, {v(vT)}, 3, {v(vWT)}")
    A(f"v_add_u32 {v(vWT)}, {s(sWM)}, {v(vWT)}")
    A(f"v_xor_b32 {v(vWT-1)}, 32, {v(vWT)}")
    A(f"v_lshrrev_b32 {v(vT)}, 4, {v(vT2)}"); A(f"v_lshlrev_b32 {v(vXG)}, 10, {v(vT)}")
    A(f"v_and_b32 {v(vT)}, 15, {v(vT2)}"); A(f"v_lshl_add_u32 {v(vXG)}, {v(vT)}, 4, {v(vXG)}")
    A("s_lshr_b32 s48, s2, 2"); A("s_lshl_b32 s48, s48, 15"); A(f"s_lshl_b32 s49, {s(sW)}, 12"); A("s_add_u32 s48, s48, s49")
    A("s_and_b32 s49, s2, 3"); A("s_lshl_b32 s49, s49, 8"); A(f"s_add_u32 s50, s48, s49")
    A(f"v_and_b32 {v(vT)}, 15, {v(vT2)}"); A(f"v_lshlrev_b32 {v(vXR)}, 8, {v(vT)}")
    A(f"v_lshrrev_b32 {v(vT)}, 4, {v(vT2)}"); A(f"v_lshl_add_u32 {v(vXR)}, {v(vT)}, 4, {v(vXR)}")
    A(f"s_lshr_b32 s48, {s(sW)}, 2"); A("s_lshl_b32 s48, s48, 12"); A("s_lshl_b32 s49, s47, 6"); A("s_add_u32 s48, s48, s49")
    A(f"s_add_u32 s48, s48, {WSCR}"); A(f"v_add_u32 {v(vXR)}, s48, {v(vXR)}")
    A("s_lshr_b32 s48, s2, 2"); A("s_lshl_b32 s48, s48, 1"); A(f"s_lshr_b32 s49, {s(sW)}, 2"); A("s_add_u32 s48, s48, s49"); A("s_lshl_b32 s48, s48, 4")
    A("s_and_b32 s49, s2, 3"); A("s_lshl_b32 s49, s49, 2"); A("s_add_u32 s48, s48, s49"); A("s_add_u32 s48, s48, s47")
    A("s_lshl_b32 s48, s48, 10"); A(f"s_add_u32 {s(sXO)}, s48, {XF_OFF}")
    A(f"s_lshl_b32 {s(sCK)}, {s(sR)}, 18"); A(f"s_and_b32 s48, {s(sW)}, 1"); A("s_lshl_b32 s48, s48, 14"); A(f"s_add_u32 {s(sCK)}, {s(sCK)}, s48")
    A(f"s_lshr_b32 {s(sG)}, {s(sW)}, 1")
    A(f"s_lshl_b32 s48, {s(sG)}, 15"); A(f"s_add_u32 {s(sCA)}, {s(sCK)}, s48")
    A(f"s_and_b32 s48, {s(sG)}, 1"); A("s_lshl_b32 s48, s48, 15"); A(f"s_lshr_b32 s49, {s(sG)}, 1"); A("s_lshl_b32 s49, s49, 8")
    A("s_add_u32 s48, s48, s49"); A(f"s_add_u32 {s(sCB)}, {s(sCK)}, s48")
    A(f"s_lshl_b32 s48, {s(sG)}, 8"); A(f"s_add_u32 {s(sCC)}, {s(sCK)}, s48")
    A(f"s_lshl_b32 {s(sOUT)}, {s(sH)}, 19"); A(f"s_lshl_b32 s48, {s(sR)}, 16"); A(f"s_add_u32 {s(sOUT)}, {s(sOUT)}, s48")
    A("s_lshl_b32 s48, s47, 11"); A(f"s_add_u32 {s(sOUT)}, {s(sOUT)}, s48")
    A(f"s_lshl_b32 s48, {s(sPART)}, 24"); A(f"s_add_u32 {s(sOUT)}, {s(sOUT)}, s48")
    A(f"s_lshl_b32 {s(sM0)}, {s(sW)}, 12")
    A("s_waitcnt lgkmcnt(0)")
    mk_srd(A, 8, 4, 2048 * 1024)
    A(f"s_cmp_eq_u32 {s(sPART)}, 0")
    A("s_cselect_b32 s12, s36, s38"); A("s_cselect_b32 s13, s37, s39"); A(f"s_mov_b32 s14, {hex(512*8192)}"); A("s_mov_b32 s15, 0x00020000")
    mk_srd(A, 16, 6, WS_BYTES)
    mk_srd(A, 20, 40, 2048 * 1024)

    def dma_chunk(c):
        t0, q0 = CHUNKS[c][0]
        base = sCA if c < 4 else (sCB if c < 6 else sCC)
        out = [f"s_add_u32 {s(sTMP)}, {s(base)}, {t0 * 32768 + q0 * 256}"]
        for j in range(4):
            out.append(f"s_add_u32 m0, {s(sM0)}, {(c % NSLOT) * SLOT}\n@tag c{c}\nbuffer_load_dwordx4 {v(vDM[j])}, s[8:11], {s(sTMP)} offen offset:{1024*j} lds\n@tag")
        return out
    def wdma(k):
        out = []
        for hh in range(2):
            out.append(f"s_add_u32 m0, {s(sWM)}, {(k % 4) * 2048 + hh * 1024}\ns_mov_b32 {s(sWOFF)}, {(32*k+16*hh)*8192}\n"
                       f"@tag w{k}\nbuffer_load_dwordx4 {v(vWG)}, s[12:15], {s(sWOFF)} offen lds\n@tag")
        return out
    def wtrans(k):
        o = (k % 4) * 2048
        out = [f"@waittag w{k}"]
        for nt in range(2):
            for t in range(2):
                out.append(f"ds_read_b64_tr_b16 {v(W+8*k+4*nt+2*t,2)}, {v(vWT-nt)} offset:{o+256*t}")
        return out
    if "stamp" in opt: A("s_memrealtime s[62:63]")
    stamp()
    for i in dma_chunk(0): A(i)
    for k in range(4):
        for i in wdma(k): A(i)
    A.wait_tag("c0")
    A("s_barrier")
    stamp()
    LV = name + "_vpart"
    A(f"s_cmp_eq_u32 {s(sPART)}, 1"); A(f"s_cbranch_scc1 {LV}")
    st0 = A.state(); n0 = nst[0]
    for part in (0, 1):
        if part == 1:
            A.label(LV); A.set_state(st0); nst[0] = n0
        S = Stream(A, RING, 8, 6)
        nx = [0]
        started = set()
        for c, groups in enumerate(CHUNKS):
            if c < 4: order = [(sp, g) for sp in range(4) for g in range(4)]
            elif c < 6: order = [(sp, g) for gh in (0, 1) for sp in range(4) for g in (2 * gh, 2 * gh + 1)]
            else: order = [(sp, g) for g in range(4) for sp in range(4)]
            last_sp = None
            for (sp, g) in order:
                t, q = groups[g]; k = q * 4 + sp
                first = t not in started; started.add(t)
                for kt in range(2):
                    newaddr = sp != last_sp; last_sp = sp
                    if newaddr: nx[0] ^= 1
                    ra = vRA[nx[0]]
                    sl = c % NSLOT
                    xc = sp * 64 + (65536 if sl >= 2 else 0)
                    off = (sl % 2) * SLOT + g * 8192 + kt * 4096
                    def rd(b, newaddr=newaddr, ra=ra, xc=xc, off=off):
                        o = []
                        if newaddr: o.append(f"v_xor_b32 {v(ra)}, {xc}, {v(vRD)}")
                        o.append(f"ds_read_b128 {v(b,4)}, {v(ra)} offset:{off}")
                        return o
                    def mf(b, t=t, k=k, kt=kt, first=first):
                        o = []
                        for nt in range(2):
                            acc = ACC + 16 * ACCSET[t] + (8 * kt + 4 * nt if part == 0 else 8 * nt + 4 * kt)
                            cc = "0" if first else v(acc, 4)
                            w = v(W + 8 * k + 4 * nt, 4)
                            if part == 0: o.append(f"{MF} {v(acc,4)}, {w}, {v(b,4)}, {cc}")
                            else: o.append(f"{MF} {v(acc,4)}, {v(b,4)}, {w}, {cc}")
                        return "\n".join(o)
                    post = []
                    if c < 4:
                        if g == 0 and kt == 0 and k + 1 < 16: post = wtrans(k + 1)
                        if g == 2 and kt == 0 and k + 4 < 16: post = wdma(k + 4)
                    S.add(rd, mf, post=post)
        fl_st = " sc1" if "sc1" in opt else (" nt" if "nt" in opt else (" sc0 sc1" if "sc01" in opt else ""))
        def pack(t, dst):
            acc = ACC + 16 * ACCSET[t]
            return [f"v_cvt_pk_bf16_f32 {v(dst+i)}, {v(acc+2*i)}, {v(acc+2*i+1)}" for i in range(8)]
        def store(t, src):
            if "nostore" in opt: return []
            return [f"s_add_u32 s51, {s(sOUT)}, {t * 8192}\nbuffer_store_dwordx4 {v(src,4)}, {v(vL16)}, s[16:19], s51 offen" + fl_st,
                    f"s_add_u32 s51, {s(sOUT)}, {t * 8192}\nbuffer_store_dwordx4 {v(src+4,4)}, {v(vL16)}, s[16:19], s51 offen offset:1024" + fl_st]
        S2 = ACC + 32; S3 = ACC + 48
        for i in wtrans(0): A(i)
        for c in range(8):
            pre = []; fl = []; fl0 = []
            if c == 0: fl0 = dma_chunk(1)
            if c == 4:
                pre = pack(0, OST) + pack(2, S2) + pack(3, S2 + 8) + pack(1, S3 + 8)
                fl = store(0, OST) + store(2, S2)
            if c == 5:
                fl = store(3, S2 + 8) + store(1, S3 + 8)
                fl0 = [f"s_lshl_b32 s48, {s(sW)}, 10\ns_add_u32 m0, s48, {WSCR}\n@tag c6\nbuffer_load_dwordx4 {v(vXG)}, s[20:23], s50 offen lds\n@tag"]
            if c == 6:
                fl0 = pack(4, OST) + pack(5, ACC + 8)
                fl = store(4, OST) + store(5, ACC + 8)
            if c == 7:
                fl0 = pack(6, OST); fl = store(6, OST)
            for i in pre: A(i)
            S.run(2)
            S.run(6, fl0)
            S.run(18, fl)
            if c < 7:
                A.wait_tag(f"c{c+1}"); A("s_barrier")
                fl = dma_chunk(c + 2) if c + 2 < 8 else []
                if c == 5:
                    fl = [f"ds_read_b128 {v(XFR,4)}, {v(vXR)}"] + fl + [f"buffer_store_dwordx4 {v(XFR,4)}, {v(vL16)}, s[16:19], {s(sXO)} offen"]
                S.run(6, fl)
            else:
                S.run(6)
            stamp()
        for i in pack(7, ACC) + store(7, ACC): A(i)
        if "stamp" in opt: A("s_waitcnt vmcnt(0)")
        stamp()
        dump_stamps()
        A("s_endpgm")
    A.label(Ldone); A.clear_state()
    A("s_endpgm")
    return descriptor(name, 252, 100)
```

```python
from common import *
import struct

SLOT = 32768
K2_LDS = 4 * SLOT
MF = "v_mfma_f32_16x16x32_bf16"
LA = 6
def f32hex(x): return hex(struct.unpack("<I", struct.pack("<f", x))[0])
CSCALE = 1.4426950408889634 * (128 ** -0.5)

def gen_k2(A, name="k2_kernel", opt=()):
    kernel_header(A, name)
    QF = 0; SB = 32; PB = 64; CI = 80; XTRA = 96; X = 0
    O = 128; RING = 192
    vL16 = 224; vKV = 225; vWA = [226, 227]; vWT = 228; vDW = [229, 230]; vTQ = 231; vNEG = 232; vT = 233; vT2 = 234
    vL = [235, 236, 237, 238]
    vM = [239, 240]; vF = [241, 242]; vT3 = 243; vT4 = 244
    sW = 24; sH = 25; sN = 26; sU = 27; sT = 28; sTL = 29; sSRC = 30; sLO = 31; sCNT = 32; sM0 = 33; sSLOT = 34; sTMP = 35
    sXO = 36; sCTX = 37; sR32 = 38; sC = 39; sWQ = 44; sKB = 45; sFAIL = 46
    L = lambda x: f"{name}_{x}"
    def Sreg(buf, qt, kt): return SB + 16 * buf + 8 * qt + 4 * kt
    def Preg(buf, qt): return PB + 8 * buf + 4 * qt
    def CIreg(qt, kt): return CI + 8 * qt + 4 * kt
    def Oreg(qt, dt): return O + 32 * qt + 4 * dt
    def Qreg(qt, j): return QF + 16 * qt + 4 * j
    def Xreg(qt, s_): return X + 64 * qt + 4 * s_
    nst = [0]
    def stamp():
        if "stamp" not in opt: return
        A(f"s_memtime s[{64+2*nst[0]}:{65+2*nst[0]}]"); A("s_waitcnt lgkmcnt(0)"); nst[0] += 1

    A("s_cmp_ge_u32 s2, 256"); A(f"s_cbranch_scc1 {L('done')}")
    A(f"s_load_dwordx2 s[4:5], s[0:1], {ARG['wq']}")
    A(f"s_load_dwordx2 s[6:7], s[0:1], {ARG['ws']}")
    A(f"v_lshrrev_b32 {v(vT)}, 6, v0")
    A(f"v_and_b32 {v(vT2)}, 63, v0")
    A(f"v_readfirstlane_b32 {s(sW)}, {v(vT)}")
    A(f"v_lshlrev_b32 {v(vL16)}, 4, {v(vT2)}")
    A("s_and_b32 s40, s2, 7"); A("s_lshr_b32 s41, s2, 3"); A("s_and_b32 s42, s41, 3"); A("s_lshl_b32 s40, s40, 2"); A(f"s_add_u32 {s(sH)}, s40, s42")
    A("s_lshr_b32 s41, s41, 2")
    A(f"s_and_b32 s42, {s(sW)}, 3"); A("s_sub_u32 s43, 15, s41"); A("s_sub_u32 s47, 3, s42")
    A(f"s_cmp_lt_u32 {s(sW)}, 4"); A("s_cselect_b32 s43, s43, s41"); A("s_cselect_b32 s42, s42, s47")
    A("s_lshl_b32 s43, s43, 2"); A(f"s_add_u32 {s(sR32)}, s43, s42")
    A(f"s_add_u32 {s(sN)}, {s(sR32)}, 1")
    A("s_lshl_b32 s43, s41, 1"); A(f"s_sub_u32 {s(sCNT)}, 32, s43"); A(f"s_add_u32 {s(sTL)}, {s(sCNT)}, 4")
    A(f"s_lshl_b32 {s(sKB)}, {s(sH)}, 19")
    A(f"s_and_b32 s42, {s(sW)}, 3"); A("s_lshl_b32 s42, s42, 12"); A(f"s_add_u32 {s(sSRC)}, {s(sKB)}, s42")
    A(f"s_lshr_b32 {s(sLO)}, {s(sW)}, 2")
    A(f"s_mul_i32 s42, {s(sLO)}, {VF_OFF - 16384}"); A(f"s_add_u32 {s(sSRC)}, {s(sSRC)}, s42")
    A(f"s_lshl_b32 {s(sM0)}, {s(sW)}, 12")
    A(f"s_lshl_b32 {s(sXO)}, {s(sR32)}, 15"); A(f"s_add_u32 {s(sXO)}, {s(sXO)}, {XF_OFF}")
    A(f"s_lshl_b32 {s(sCTX)}, {s(sR32)}, 6"); A(f"s_add_u32 {s(sCTX)}, {s(sCTX)}, {s(sH)}"); A(f"s_lshl_b32 {s(sCTX)}, {s(sCTX)}, 12"); A(f"s_add_u32 {s(sCTX)}, {s(sCTX)}, {CTX_OFF}")
    A(f"s_mov_b32 {s(sC)}, {f32hex(CSCALE)}")
    A(f"v_lshrrev_b32 {v(vT)}, 4, {v(vT2)}"); A(f"v_and_b32 {v(vT3)}, 15, {v(vT2)}")
    A(f"v_lshlrev_b32 {v(vT4)}, 1, {v(vT)}"); A(f"v_xor_b32 {v(vT3)}, {v(vT3)}, {v(vT4)}"); A(f"v_lshlrev_b32 {v(vT3)}, 4, {v(vT3)}")
    A(f"v_lshl_add_u32 {v(vDW[0])}, {v(vT)}, 13, {v(vT3)}")
    A(f"v_xor_b32 {v(vDW[1])}, 128, {v(vDW[0])}")
    A(f"s_lshl_b32 {s(sWQ)}, {s(sH)}, 8"); A(f"s_lshl_b32 s42, {s(sW)}, 17"); A(f"s_add_u32 {s(sWQ)}, {s(sWQ)}, s42")
    A(f"v_lshrrev_b32 {v(vT)}, 4, {v(vT2)}"); A(f"v_lshlrev_b32 {v(vWT)}, 11, {v(vT)}")
    A(f"v_bfe_u32 {v(vT)}, {v(vT2)}, 2, 2"); A(f"v_lshl_add_u32 {v(vWT)}, {v(vT)}, 8, {v(vWT)}"); A(f"v_lshl_add_u32 {v(vWT)}, {v(vT)}, 5, {v(vWT)}")
    A(f"v_bfe_u32 {v(vT)}, {v(vT2)}, 4, 1"); A(f"v_lshl_add_u32 {v(vWT)}, {v(vT)}, 7, {v(vWT)}")
    A(f"v_and_b32 {v(vT)}, 3, {v(vT2)}"); A(f"v_lshl_add_u32 {v(vWT)}, {v(vT)}, 3, {v(vWT)}")
    A(f"v_and_b32 {v(vT)}, 15, {v(vT2)}"); A(f"v_lshrrev_b32 {v(vT3)}, 4, {v(vT2)}"); A(f"v_lshlrev_b32 {v(vT3)}, 2, {v(vT3)}"); A(f"v_sub_u32 {v(vTQ)}, {v(vT)}, {v(vT3)}")
    A(f"v_mov_b32 {v(vNEG)}, {f32hex(-1e30)}")
    A("s_waitcnt lgkmcnt(0)")
    mk_srd(A, 8, 4, 512 * 8192)
    mk_srd(A, 16, 6, WS_BYTES)

    def dma_wq(T):
        out = []
        for jj in range(4):
            out.append(f"s_add_u32 m0, {s(sM0)}, {(T % 4) * SLOT}\ns_add_u32 {s(sTMP)}, {s(sWQ)}, {T * 128 * 8192 + jj * (32768 - 1024)}\n"
                       f"@tag T{T}\nbuffer_load_dwordx4 {v(vDW[jj >> 1])}, s[8:11], {s(sTMP)} offen offset:{1024*jj} lds\n@tag")
        return out
    def dma_kv_static(T):
        st = T - 4
        out = [f"s_sub_u32 {s(sTMP)}, {st}, {s(sLO)}\ns_cmp_lt_u32 {s(sTMP)}, {s(sCNT)}\ns_add_u32 {s(sTMP)}, {s(sSRC)}, {st * 16384}"]
        out = [f"s_add_u32 s47, {s(sSRC)}, {st * 16384}\ns_sub_u32 {s(sTMP)}, {st}, {s(sLO)}\ns_cmp_lt_u32 {s(sTMP)}, {s(sCNT)}\ns_cselect_b32 {s(sTMP)}, s47, 0x7ff00000"]
        for jj in range(4):
            out.append(f"s_add_u32 m0, {s(sM0)}, {(T % 4) * SLOT}\n@tag T{T}\nbuffer_load_dwordx4 {v(vL16)}, s[16:19], {s(sTMP)} offen offset:{1024*jj} lds\n@tag")
        return out
    def xload(T):
        out = []
        for qt in range(2):
            out.append(f"s_add_u32 s48, {s(sXO)}, {qt * 16384 + T * 4096}")
            for ss in range(4):
                out.append(f"buffer_load_dwordx4 {v(Xreg(qt, 4*T+ss),4)}, {v(vL16)}, s[16:19], s48 offen offset:{1024*ss}")
        return out

    if "stamp" in opt: A("s_memrealtime s[62:63]")
    stamp()
    for i in dma_wq(0) + xload(0): A(i)
    A.wait_tag("T0"); A("s_barrier")
    stamp()
    S = Stream(A, RING, 8, 5)
    nx = [0]
    for T in range(4):
        for dt in range(8):
            for ks in range(4):
                newaddr = ks == 0
                if newaddr: nx[0] ^= 1
                ra = vWA[nx[0]]
                xc = dt * 32 + (65536 if T >= 2 else 0)
                off = (T % 2) * SLOT + ks * 8192
                def rd(b, newaddr=newaddr, ra=ra, xc=xc, off=off):
                    o = []
                    if newaddr: o.append(f"v_xor_b32 {v(ra)}, {xc}, {v(vWT)}")
                    o.append(f"ds_read_b64_tr_b16 {v(b,2)}, {v(ra)} offset:{off}")
                    o.append(f"ds_read_b64_tr_b16 {v(b+2,2)}, {v(ra)} offset:{off+1024}")
                    return o
                def mf(b, T=T, dt=dt, ks=ks):
                    o = []
                    for qt in range(2):
                        acc = Oreg(qt, dt)
                        cc = "0" if (T == 0 and ks == 0) else v(acc, 4)
                        o.append(f"{MF} {v(acc,4)}, {v(b,4)}, {v(Xreg(qt, 4*T+ks),4)}, {cc}")
                    return "\n".join(o)
                S.add(rd, mf)
    for T in range(4):
        fl0 = []
        if T == 0: fl0 = dma_wq(1) + xload(1) + dma_wq(2)
        else:
            if T + 1 < 4: fl0 = xload(T + 1)
        S.run(16, fl0)
        A.wait_tag(f"T{T+1}"); A("s_barrier")
        nxt = T + 3
        fl = dma_wq(nxt) if nxt < 4 else dma_kv_static(nxt)
        S.run(16, fl)
    stamp()
    A(f"v_mov_b32 {v(vKV)}, {v(vL16)}")
    def kread(b, f, half): return f"ds_read_b128 {v(RING+4*b,4)}, {v(vKV)} offset:{half*8192 + f*1024}"
    def vread(b, f, half): return f"ds_read_b128 {v(RING+4*b,4)}, {v(vKV)} offset:{16384 + half*8192 + f*1024}"
    for f in range(LA): A(kread(f, f, 0))
    for qt in range(2):
        for dt in range(8):
            for e in range(4): A(f"v_mul_f32 {v(Oreg(qt,dt)+e)}, {s(sC)}, {v(Oreg(qt,dt)+e)}")
        for i in range(16):
            A(f"v_cvt_pk_bf16_f32 {v(QF+16*qt+i)}, {v(O+32*qt+2*i)}, {v(O+32*qt+2*i+1)}")
    for i in range(64): A(f"v_mov_b32 {v(O+i)}, 0")
    for i in range(16): A(f"v_mov_b32 {v(CI+i)}, 0")
    for r in vL: A(f"v_mov_b32 {v(r)}, 0")
    A(f"s_mov_b32 {s(sT)}, 4"); A(f"s_mov_b32 {s(sFAIL)}, 0")

    def apply_mask():
        k = 0
        for qt in range(2):
            for kt in range(2):
                for e in range(4):
                    r = CIreg(qt, kt) + e
                    if kt < qt: continue
                    if kt > qt: A(f"v_mov_b32 {v(r)}, {v(vNEG)}"); continue
                    sp = 48 + 2 * (k % 4); k += 1
                    A(f"v_cmp_gt_i32 {s(sp,2)}, {e}, {v(vTQ)}")
                    A(f"v_cndmask_b32 {v(r)}, {v(r)}, {v(vNEG)}, {s(sp,2)}")
    def mask_if(sreg_or_const_eq_n_minus):
        lab = A.newlabel(L("nomask"))
        A(f"s_cmp_lg_u32 {s(sN)}, {sreg_or_const_eq_n_minus}"); A(f"s_cbranch_scc1 {lab}")
        apply_mask()
        A.label(lab)
    def canon():
        A.lq = [frozenset(regs_of(v(RING + 4 * f, 4))) for f in range(LA)]
        A.vq = []
    def duty():
        lab = A.newlabel(L("noduty"))
        A(f"s_cmp_ge_u32 {s(sT)}, {s(sTL)}"); A(f"s_cbranch_scc1 {lab}")
        A("s_waitcnt vmcnt(4)"); A("s_barrier")
        A(f"s_sub_u32 s42, {s(sT)}, 1")
        A(f"s_lshl_b32 s47, s42, 14"); A(f"s_add_u32 s47, s47, {s(sSRC)}")
        A(f"s_and_b32 s43, s42, 3"); A("s_lshl_b32 s43, s43, 15"); A(f"s_add_u32 m0, s43, {s(sM0)}")
        A(f"s_sub_u32 s42, s42, {s(sLO)}"); A(f"s_cmp_lt_u32 s42, {s(sCNT)}"); A(f"s_cselect_b32 s47, s47, 0x7ff00000")
        for jj in range(4):
            A(f"buffer_load_dwordx4 {v(vL16)}, s[16:19], s47 offen offset:{1024*jj} lds")
        A.label(lab)
        A(f"s_add_u32 {s(sT)}, {s(sT)}, 1")
        A(f"s_and_b32 {s(sSLOT)}, {s(sT)}, 3"); A(f"s_lshl_b32 {s(sSLOT)}, {s(sSLOT)}, 15")
        A.vq = []

    def body(par, qk, sm, pv):
        half = 0 if par == 1 else 1
        sb_w = (par + 1) & 1
        sb_r = par
        pb_r = (par + 1) & 1
        uses = []
        if qk:
            for f in range(8):
                j, kt = f >> 1, f & 1
                mfs = []
                for qt in range(2):
                    d = Sreg(sb_w, qt, kt); c = v(CIreg(qt, kt), 4) if j == 0 else v(d, 4)
                    mfs.append(lambda b, d=d, c=c, qt=qt, j=j: f"{MF} {v(d,4)}, {v(RING+4*b,4)}, {v(Qreg(qt,j),4)}, {c}")
                uses.append(("k", f, mfs))
        if pv:
            for dt in range(8):
                mfs = []
                for qt in range(2):
                    d = Oreg(qt, dt)
                    mfs.append(lambda b, d=d, qt=qt: f"{MF} {v(d,4)}, {v(RING+4*b,4)}, {v(Preg(pb_r,qt),4)}, {v(d,4)}")
                uses.append(("v", dt, mfs))
        nu = len(uses)
        reads = []
        for (kind, f, _) in uses: reads.append((kind, f, half, False))
        for f in range(LA): reads.append(("k", f, 1 - half, True))
        exps, adds, cvts = [], [], []
        if sm:
            for qt in range(2):
                for i in range(8):
                    r = Sreg(sb_r, qt, 0) + i
                    exps.append(f"v_exp_f32 {v(r)}, {v(r)}")
                    adds.append(f"v_add_f32 {v(vL[2*qt+(i&1)])}, {v(r)}, {v(vL[2*qt+(i&1)])}")
                for i in range(4):
                    r = Sreg(sb_r, qt, 0) + 2 * i
                    cvts.append(f"v_cvt_pk_bf16_f32 {v(Preg(sb_r,qt)+i)}, {v(r)}, {v(r+1)}")
        assert nu in (8, 16)
        issued = LA if qk else 0
        slot_updated = [False]
        def issue(p):
            kind, f, hf, nxt = reads[p]
            b = (p % 8)
            if nxt and par == 0 and not slot_updated[0]:
                A(f"v_add_u32 {v(vKV)}, {s(sSLOT)}, {v(vL16)}"); slot_updated[0] = True
            A(kread(b, f, hf) if kind == "k" else vread(b, f, hf))
        if not qk:
            for p in range(LA): issue(p)
            issued = LA
        per = 16 // nu
        ei = ai = ci = 0
        for p, (kind, f, mfs) in enumerate(uses):
            b = p % 8
            A(mfs[0](b))
            for _ in range(per):
                if ei < len(exps): A(exps[ei]); ei += 1
            A(mfs[1](b))
            if issued < len(reads): issue(issued); issued += 1
            while ai < ei - 1 and ai < len(adds): A(adds[ai]); ai += 1
            while ci < len(cvts) and 2 * ci + 1 < ai: A(cvts[ci]); ci += 1
        while ai < len(adds): A(adds[ai]); ai += 1
        while ci < len(cvts): A(cvts[ci]); ci += 1

    def xlane(op, r, t):
        A(f"v_mov_b32 {v(t)}, {v(r)}"); A(f"v_permlane32_swap_b32 {v(r)}, {v(t)}"); A(f"{op} {v(r)}, {v(r)}, {v(t)}")
        A(f"v_mov_b32 {v(t)}, {v(r)}"); A(f"v_permlane16_swap_b32 {v(r)}, {v(t)}"); A(f"{op} {v(r)}, {v(r)}, {v(t)}")
    def rowmax(buf, qt, dst):
        r = Sreg(buf, qt, 0)
        A(f"v_max3_f32 {v(dst)}, {v(r)}, {v(r+1)}, {v(r+2)}")
        A(f"v_max3_f32 {v(dst)}, {v(dst)}, {v(r+3)}, {v(r+4)}")
        A(f"v_max3_f32 {v(dst)}, {v(dst)}, {v(r+5)}, {v(r+6)}")
        A(f"v_max_f32 {v(dst)}, {v(dst)}, {v(r+7)}")
        xlane("v_max_f32", dst, vT)

    mask_if(1)
    body(1, True, False, False)
    for qt in range(2):
        rowmax(0, qt, vM[qt])
        for i in range(8):
            A(f"v_sub_f32 {v(Sreg(0,qt,0)+i)}, {v(Sreg(0,qt,0)+i)}, {v(vM[qt])}")
            A(f"v_sub_f32 {v(CIreg(qt,0)+i)}, 0, {v(vM[qt])}")
    duty()
    mask_if(2)
    body(0, True, True, False)
    A(f"s_cmp_eq_u32 {s(sN)}, 1"); A(f"s_cbranch_scc1 {L('Hodd')}")
    A(f"s_mov_b32 {s(sU)}, 2")
    stamp()
    A.label(L("loop")); canon()
    A(f"s_cmp_eq_u32 {s(sU)}, {s(sN)}"); A(f"s_cbranch_scc1 {L('Godd')}")
    A(f"s_add_u32 {s(sU)}, {s(sU)}, 1")
    mask_if(s(sU))
    body(1, True, True, True)
    duty()
    A(f"s_cmp_eq_u32 {s(sU)}, {s(sN)}"); A(f"s_cbranch_scc1 {L('Geven')}")
    A(f"s_add_u32 {s(sU)}, {s(sU)}, 1")
    mask_if(s(sU))
    body(0, True, True, True)
    A(f"s_branch {L('loop')}")
    A.label(L("Godd")); canon()
    body(1, False, True, True)
    duty()
    body(0, False, False, True)
    A(f"s_branch {L('epi')}")
    A.label(L("Geven")); canon()
    body(0, False, True, True)
    A.label(L("Hodd")); canon()
    body(1, False, False, True)
    duty()
    A.label(L("epi")); canon()
    n_epi = nst[0]
    stamp()

    def epilogue(check):
        for qt in range(2):
            A(f"v_add_f32 {v(vL[2*qt])}, {v(vL[2*qt])}, {v(vL[2*qt+1])}")
            xlane("v_add_f32", vL[2 * qt], vT)
        if check:
            thr = f32hex(2.0 ** 60) if "forceslow" not in opt else f32hex(-1.0)
            A(f"v_mov_b32 {v(vT)}, {thr}")
            A(f"v_cmp_nlt_f32 s[48:49], {v(vL[0])}, {v(vT)}"); A(f"v_cmp_nlt_f32 s[50:51], {v(vL[2])}, {v(vT)}")
            A("s_or_b64 s[48:49], s[48:49], s[50:51]"); A("s_cmp_lg_u64 s[48:49], 0")
            A(f"s_cselect_b32 {s(sFAIL)}, 1, 0"); A(f"s_cbranch_scc1 {L('idle')}")
        for qt in range(2):
            A(f"v_rcp_f32 {v(vF[qt])}, {v(vL[2*qt])}")
        for qt in range(2):
            for i in range(32): A(f"v_mul_f32 {v(O+32*qt+i)}, {v(vF[qt])}, {v(O+32*qt+i)}")
            for i in range(16): A(f"v_cvt_pk_bf16_f32 {v(SB+16*qt+i)}, {v(O+32*qt+2*i)}, {v(O+32*qt+2*i+1)}")
            A(f"s_add_u32 s48, {s(sCTX)}, {qt * 32 * 4096}")
            for j in range(4):
                A(f"buffer_store_dwordx4 {v(SB+16*qt+4*j,4)}, {v(vL16)}, s[16:19], s48 offen offset:{1024*j}")
    epilogue(True)
    A.label(L("idle")); canon()
    A(f"s_cmp_ge_u32 {s(sT)}, {s(sTL)}"); A(f"s_cbranch_scc1 {L('fin')}")
    duty()
    A(f"s_branch {L('idle')}")
    A.label(L("fin")); canon()
    A("s_waitcnt vmcnt(0) lgkmcnt(0)")
    if "stamp" in opt:
        stamp()
        A("s_memrealtime s[60:61]"); A("s_waitcnt lgkmcnt(0)"); A(f"s_sub_u32 s60, s60, s62")
        for i in range(nst[0]): A(f"v_writelane_b32 {v(vT)}, s{64+2*i}, {i}")
        A(f"v_writelane_b32 {v(vT)}, s60, 15")
        A("s_lshl_b32 s48, s2, 3"); A(f"s_add_u32 s48, s48, {s(sW)}"); A("s_lshl_b32 s48, s48, 8"); A(f"s_add_u32 s48, s48, {129*MB}")
        A(f"v_lshrrev_b32 {v(vT2)}, 2, {v(vL16)}")
        A(f"buffer_store_dword {v(vT)}, {v(vT2)}, s[16:19], s48 offen")
    A(f"s_cmp_eq_u32 {s(sFAIL)}, 0"); A(f"s_cbranch_scc1 {L('done')}")
    for i in range(64): A(f"v_mov_b32 {v(O+i)}, 0")
    for i in range(16): A(f"v_mov_b32 {v(CI+i)}, 0")
    for r in vL: A(f"v_mov_b32 {v(r)}, 0")
    for qt in range(2): A(f"v_mov_b32 {v(vM[qt])}, {v(vNEG)}")
    A(f"s_mov_b32 {s(sU)}, 1"); A(f"s_mov_b32 s47, {s(sKB)}")
    A.label(L("slow")); A.clear_state()
    A(f"s_add_u32 s43, s47, 4096"); A(f"s_add_u32 s42, s47, {VF_OFF}"); A(f"s_add_u32 s41, s42, 4096")
    for f in range(8):
        A(f"buffer_load_dwordx4 {v(RING+4*f,4)}, {v(vL16)}, s[16:19], {'s47' if f < 4 else 's43'} offen offset:{1024*(f&3)}")
    for f in range(8):
        A(f"buffer_load_dwordx4 {v(XTRA+4*f,4)}, {v(vL16)}, s[16:19], {'s42' if f < 4 else 's41'} offen offset:{1024*(f&3)}")
    st = A.state()
    mask_if(s(sU))
    for f in range(8):
        j, kt = f >> 1, f & 1
        for qt in range(2):
            d = Sreg(0, qt, kt); c = v(CIreg(qt, kt), 4) if j == 0 else v(d, 4)
            A(f"{MF} {v(d,4)}, {v(RING+4*f,4)}, {v(Qreg(qt,j),4)}, {c}")
    for qt in range(2):
        rowmax(0, qt, vT3)
        A(f"v_max_f32 {v(vT3)}, {v(vT3)}, {v(vM[qt])}")
        A(f"v_sub_f32 {v(vF[qt])}, {v(vM[qt])}, {v(vT3)}"); A(f"v_exp_f32 {v(vF[qt])}, {v(vF[qt])}")
        A(f"v_mov_b32 {v(vM[qt])}, {v(vT3)}")
        A(f"v_mul_f32 {v(vL[2*qt])}, {v(vF[qt])}, {v(vL[2*qt])}")
        for i in range(8):
            r = Sreg(0, qt, 0) + i
            A(f"v_sub_f32 {v(r)}, {v(r)}, {v(vT3)}"); A(f"v_exp_f32 {v(r)}, {v(r)}")
        for i in range(8): A(f"v_add_f32 {v(vL[2*qt])}, {v(Sreg(0,qt,0)+i)}, {v(vL[2*qt])}")
        for i in range(4): A(f"v_cvt_pk_bf16_f32 {v(Preg(0,qt)+i)}, {v(Sreg(0,qt,0)+2*i)}, {v(Sreg(0,qt,0)+2*i+1)}")
        for i in range(32): A(f"v_mul_f32 {v(O+32*qt+i)}, {v(vF[qt])}, {v(O+32*qt+i)}")
    for dt in range(8):
        for qt in range(2):
            d = Oreg(qt, dt)
            A(f"{MF} {v(d,4)}, {v(XTRA+4*dt,4)}, {v(Preg(0,qt),4)}, {v(d,4)}")
    A(f"s_add_u32 s47, s47, 8192"); A(f"s_add_u32 {s(sU)}, {s(sU)}, 1")
    A(f"s_cmp_le_u32 {s(sU)}, {s(sN)}"); A(f"s_cbranch_scc1 {L('slow')}")
    epilogue(False)
    A.label(L("done")); A.clear_state()
    A("s_endpgm")
    return descriptor(name, 248, 100)
```

```python
from common import *
import struct, math

GRID = 512
BLOCK = 256
K3_LDS = 65536
MF = "v_mfma_f32_16x16x32_bf16"
def f32hex(x): return hex(struct.unpack("<I", struct.pack("<f", x))[0])

def gen_outproj(A, name, opt):
    D = 4
    ACC = 0
    CX = 64
    WF = 128
    vL16 = 160; vWD = 161; vWR = [162, 163, 164, 165]; vT = 166; vT2 = 167; vT3 = 168; vRW = 169; vRR = 170; vST = 171
    sW = 24; sCX = 25; sWO = 26; sM0 = 27; sK = 28; sTMP = 29; sQ = 30; sMT = 31
    A(f"s_load_dwordx2 s[4:5], s[0:1], {ARG['wo']}")
    A(f"s_load_dwordx2 s[6:7], s[0:1], {ARG['ws']}")
    A(f"s_load_dwordx2 s[40:41], s[0:1], {ARG['out']}")
    A(f"v_lshrrev_b32 {v(vT)}, 6, v0"); A(f"v_and_b32 {v(vT2)}, 63, v0")
    A(f"v_readfirstlane_b32 {s(sW)}, {v(vT)}")
    A(f"v_lshlrev_b32 {v(vL16)}, 4, {v(vT2)}")
    A("s_and_b32 s42, s3, 7"); A("s_lshr_b32 s43, s3, 3"); A("s_and_b32 s44, s43, 3"); A("s_lshl_b32 s42, s42, 2"); A(f"s_add_u32 {s(sQ)}, s42, s44")
    A(f"s_lshr_b32 {s(sMT)}, s43, 2")
    A(f"s_lshl_b32 {s(sCX)}, {s(sQ)}, 19"); A(f"s_lshl_b32 s42, {s(sW)}, 15"); A(f"s_add_u32 {s(sCX)}, {s(sCX)}, s42"); A(f"s_add_u32 {s(sCX)}, {s(sCX)}, {CTX_OFF}")
    A(f"s_lshl_b32 {s(sWO)}, {s(sW)}, 20"); A(f"s_lshl_b32 s42, {s(sMT)}, 7"); A(f"s_add_u32 {s(sWO)}, {s(sWO)}, s42")
    A(f"s_lshl_b32 {s(sM0)}, {s(sW)}, 14")
    A(f"v_lshrrev_b32 {v(vT)}, 3, {v(vT2)}"); A(f"v_lshlrev_b32 {v(vWD)}, 10, {v(vT)}")
    A(f"v_lshrrev_b32 {v(vT)}, 4, {v(vT2)}"); A(f"v_lshlrev_b32 {v(vT)}, 1, {v(vT)}"); A(f"v_and_b32 {v(vT3)}, 7, {v(vT2)}"); A(f"v_xor_b32 {v(vT)}, {v(vT)}, {v(vT3)}")
    A(f"v_lshl_add_u32 {v(vWD)}, {v(vT)}, 4, {v(vWD)}")
    A(f"v_lshrrev_b32 {v(vT)}, 2, {v(vT2)}"); A(f"v_lshlrev_b32 {v(vWR[0])}, 7, {v(vT)}")
    A(f"v_bfe_u32 {v(vT)}, {v(vT2)}, 3, 2"); A(f"v_lshl_add_u32 {v(vWR[0])}, {v(vT)}, 5, {v(vWR[0])}")
    A(f"v_and_b32 {v(vT)}, 3, {v(vT2)}"); A(f"v_lshl_add_u32 {v(vWR[0])}, {v(vT)}, 3, {v(vWR[0])}")
    A(f"v_add_u32 {v(vWR[0])}, {s(sM0)}, {v(vWR[0])}")
    for mt in range(1, 4): A(f"v_xor_b32 {v(vWR[mt])}, {32*mt}, {v(vWR[0])}")
    A(f"v_add_u32 {v(vRW)}, {s(sM0)}, {v(vL16)}")
    A(f"v_bfe_u32 {v(vT)}, {v(vT2)}, 1, 2"); A(f"v_lshlrev_b32 {v(vRR)}, 10, {v(vT)}")
    A(f"v_and_b32 {v(vT)}, 1, {v(vT2)}"); A(f"v_lshl_add_u32 {v(vRR)}, {v(vT)}, 9, {v(vRR)}")
    A(f"v_lshrrev_b32 {v(vT)}, 3, {v(vT2)}"); A(f"v_lshl_add_u32 {v(vRR)}, {v(vT)}, 4, {v(vRR)}")
    A(f"s_lshl_b32 s42, {s(sW)}, 12"); A(f"v_add_u32 {v(vRR)}, s42, {v(vRR)}")
    A(f"v_lshlrev_b32 {v(vST)}, 11, {v(vT)}"); A(f"v_and_b32 {v(vT)}, 7, {v(vT2)}"); A(f"v_lshl_add_u32 {v(vST)}, {v(vT)}, 4, {v(vST)}")
    A("s_waitcnt lgkmcnt(0)")
    mk_srd(A, 8, 4, 4096 * 1024); mk_srd(A, 16, 6, WS_BYTES); mk_srd(A, 20, 40, 2048 * 2048)
    def loads(k):
        out = []
        sl = k % D
        for jj in range(4):
            out.append(f"s_add_u32 m0, {s(sM0)}, {sl*4096}\ns_add_u32 {s(sTMP)}, {s(sWO)}, {k*32768 + jj*(8192-1024)}\n@tag w{k}\n"
                       f"buffer_load_dwordx4 {v(vWD)}, s[8:11], {s(sTMP)} offen offset:{1024*jj} lds\n@tag")
        for qt in range(4):
            out.append(f"s_add_u32 {s(sTMP)}, {s(sCX)}, {qt*131072 + k*1024}\nbuffer_load_dwordx4 {v(CX+16*sl+4*qt,4)}, {v(vL16)}, s[16:19], {s(sTMP)} offen")
        return out
    def wreads(k):
        out = [f"@waittag w{k}"]
        for mt in range(4):
            for t in range(2):
                out.append(f"ds_read_b64_tr_b16 {v(WF+16*(k%2)+4*mt+2*t,2)}, {v(vWR[mt])} offset:{(k%D)*4096 + t*2048}")
        return out
    NK = 32
    for k in range(D):
        for i in loads(k): A(i)
    for i in wreads(0): A(i)
    for k in range(NK):
        mf = []
        for qt in range(4):
            for mt in range(4):
                acc = ACC + 16 * qt + 4 * mt
                c = "0" if k == 0 else v(acc, 4)
                mf.append(f"{MF} {v(acc,4)}, {v(WF+16*(k%2)+4*mt,4)}, {v(CX+16*(k%D)+4*qt,4)}, {c}")
        for i in mf[:4]: A(i)
        if k + 1 < NK:
            for i in wreads(k + 1): A(i)
        ld = loads(k + D) if k + D < NK else []
        for j, i in enumerate(mf[4:]):
            A(i)
            if j in (1, 3, 5, 7) and ld: A(ld[(j - 1) // 2])
            if j in (3, 7, 11) and ld: A(ld[4 + (j - 3) // 4])
        if ld: A(ld[7])
    A("s_barrier")
    for t in range(16):
        A(f"ds_write_b128 {v(vRW)}, {v(ACC+4*t,4)} offset:{t*1024}")
    A("s_waitcnt lgkmcnt(0)"); A("s_barrier")
    R = 64
    A(f"s_lshl_b32 s42, {s(sQ)}, 17"); A(f"s_lshl_b32 s43, {s(sW)}, 15"); A("s_add_u32 s42, s42, s43"); A(f"s_lshl_b32 s43, {s(sMT)}, 7"); A("s_add_u32 s42, s42, s43"); A("s_add_u32 s42, s42, 1024")
    for i in range(2):
        for sw in range(4):
            for h in range(2):
                A(f"ds_read_b128 {v(R+32*i+8*sw+4*h,4)}, {v(vRR)} offset:{sw*16384 + i*128 + h*256}")
    for i in range(2):
        b = R + 32 * i
        for e in range(8):
            A(f"v_add_f32 {v(b+e)}, {v(b+e)}, {v(b+8+e)}"); A(f"v_add_f32 {v(b+16+e)}, {v(b+16+e)}, {v(b+24+e)}")
        for e in range(8): A(f"v_add_f32 {v(b+e)}, {v(b+e)}, {v(b+16+e)}")
        for e in range(4): A(f"v_cvt_pk_bf16_f32 {v(b+8+e)}, {v(b+2*e)}, {v(b+2*e+1)}")
        if i: A("s_add_u32 s42, s42, 16384")
        A(f"buffer_store_dwordx4 {v(b+8,4)}, {v(vST)}, s[20:23], s42 offen")
    A("s_endpgm")

def gen_k3(A, name="k3_kernel", opt=()):
    kernel_header(A, name)
    L = lambda x: f"{name}_{x}"
    A("s_cmp_ge_u32 s2, 512"); A(f"s_cbranch_scc1 {L('done')}")
    A("s_lshr_b32 s4, s2, 3"); A("s_and_b32 s5, s4, 1"); A("s_lshr_b32 s6, s4, 5"); A("s_xor_b32 s5, s5, s6")
    A("s_lshr_b32 s4, s4, 1"); A("s_lshl_b32 s4, s4, 3"); A("s_and_b32 s3, s2, 7"); A("s_add_u32 s3, s3, s4")
    A("s_cmp_eq_u32 s5, 1"); A(f"s_cbranch_scc1 {L('ssm')}")
    gen_outproj(A, name, opt)
    A.label(L("ssm")); A.clear_state()
    try:
        import ssm
        ssm.gen_ssm(A, name, opt)
    except ImportError:
        pass
    A.label(L("done")); A.clear_state()
    A("s_endpgm")
    return descriptor(name, 176, 100)
```

```python
from common import *
import struct, math
MF = "v_mfma_f32_16x16x32_bf16"
MF32 = "v_mfma_f32_16x16x4_f32"
def f32hex(x): return hex(struct.unpack("<I", struct.pack("<f", x))[0])
def f32(x): return struct.unpack("<f", struct.pack("<f", x))[0]
L2E = 1.4426950408889634
L2E_HI = f32(L2E); L2E_LO = L2E - L2E_HI
TREG = 8704
UOFF = 4 * TREG; USZ = 4160
KOFF = UOFF + 2 * USZ; KSZ = 4608
ROWB = 528

def gen_ssm(A, name, opt):
    U = 160
    vLane = 168; vT = 169; vT2 = 170; vT3 = 171; vTid = 172; vD = 173; vD1 = 174; vT4 = 175
    sW = 44; sD0 = 45; sD = 46; sTB = 47
    A(f"s_load_dwordx8 s[48:55], s[0:1], 0")
    A(f"s_load_dwordx4 s[56:59], s[0:1], 32")
    A(f"s_load_dwordx2 s[60:61], s[0:1], 48")
    A(f"s_load_dwordx2 s[62:63], s[0:1], {ARG['out']}")
    A(f"v_mov_b32 {v(vTid)}, v0")
    A(f"v_lshrrev_b32 {v(vT)}, 6, v0"); A(f"v_and_b32 {v(vLane)}, 63, v0")
    A(f"v_readfirstlane_b32 {s(sW)}, {v(vT)}")
    A("s_and_b32 s4, s3, 7"); A("s_lshr_b32 s5, s3, 3"); A("s_lshl_b32 s4, s4, 6"); A("s_lshl_b32 s5, s5, 1"); A(f"s_add_u32 {s(sD0)}, s4, s5")
    A(f"s_lshr_b32 s4, {s(sW)}, 1"); A(f"s_add_u32 {s(sD)}, {s(sD0)}, s4")
    A(f"s_mul_i32 {s(sTB)}, {s(sW)}, {TREG}")
    A("s_waitcnt lgkmcnt(0)")
    mk_srd(A, 8, 48, 2048 * 1024)
    mk_srd(A, 12, 50, 512 * 256); mk_srd(A, 16, 52, 512 * 256); mk_srd(A, 20, 54, 512 * 256); mk_srd(A, 24, 56, 512 * 256)
    mk_srd(A, 28, 58, 1024); mk_srd(A, 32, 60, 1024); mk_srd(A, 36, 62, 2048 * 2048)
    pLA, pAI, pCR, pCI, pDT = 0, 1, 2, 3, 4
    A(f"v_lshlrev_b32 {v(vT)}, 1, {v(vTid)}"); A(f"s_lshl_b32 s4, {s(sD0)}, 8")
    for r, sd in ((pLA, 12), (pAI, 16), (pCR, 20), (pCI, 24)):
        A(f"buffer_load_ushort {v(r)}, {v(vT)}, {s(sd,4)}, s4 offen")
    A(f"v_mov_b32 {v(vT2)}, 0"); A(f"s_lshl_b32 s5, {s(sD)}, 1"); A(f"s_lshl_b32 s6, {s(sD0)}, 1")
    A(f"buffer_load_ushort {v(pDT)}, {v(vT2)}, s[28:31], s5 offen")
    A(f"buffer_load_dword {v(vD)}, {v(vT2)}, s[32:35], s6 offen")
    A(f"v_lshlrev_b32 {v(vT3)}, 10, {v(vTid)}")
    for i in range(8):
        if i: A(f"s_add_u32 s6, s6, {256*1024}")
        A(f"buffer_load_dword {v(U+i)}, {v(vT3)}, s[8:11], s6 offen")
    Z = 8
    for i in range(4): A(f"v_mov_b32 {v(Z+i)}, 0")
    A(f"s_lshr_b32 s4, {s(sW)}, 1"); A(f"s_mul_i32 s5, s4, {KSZ}"); A(f"s_add_u32 s5, s5, {KOFF + 4096}"); A(f"s_mul_i32 s7, s4, {USZ}"); A(f"s_add_u32 s7, s7, {UOFF}")
    A(f"v_and_b32 {v(vT)}, 31, {v(vLane)}"); A(f"v_lshlrev_b32 {v(vT)}, 4, {v(vT)}"); A(f"v_add_u32 {v(vT)}, s5, {v(vT)}")
    A(f"ds_write_b128 {v(vT)}, {v(Z,4)}")
    A(f"v_and_b32 {v(vT)}, 1, {v(vLane)}"); A(f"v_lshlrev_b32 {v(vT)}, 4, {v(vT)}"); A(f"v_add_u32 {v(vT)}, s7, {v(vT)}")
    A(f"ds_write_b128 {v(vT)}, {v(Z,4)}")
    def pexp(dst, x, t1, t2):
        A(f"v_mul_f32 {v(t1)}, {f32hex(L2E_HI)}, {v(x)}")
        A(f"v_mov_b32 {v(t2)}, {f32hex(L2E_HI)}")
        A(f"v_fma_f32 {v(t2)}, {v(x)}, {v(t2)}, -{v(t1)}")
        A(f"v_fmac_f32 {v(t2)}, {f32hex(L2E_LO)}, {v(x)}")
        A(f"v_exp_f32 {v(t1)}, {v(t1)}")
        A(f"v_mul_f32 {v(t2)}, {f32hex(math.log(2.0))}, {v(t2)}")
        A(f"v_fma_f32 {v(t1)}, {v(t1)}, {v(t2)}, {v(t1)}")
        A(f"v_cvt_pk_bf16_f32 {v(t1)}, {v(t1)}, {v(t1)}")
        A(f"v_lshlrev_b32 {v(dst)}, 16, {v(t1)}")
    for r in (pLA, pAI, pCR, pCI, pDT): A(f"v_lshlrev_b32 {v(r)}, 16, {v(r)}")
    pexp(pDT, pDT, vT, vT2); pexp(pLA, pLA, vT, vT2)
    AR, AI, CR, CI_ = 0, 1, 2, 3
    A(f"v_mul_f32 {v(AR)}, {v(pLA)}, {v(pDT)}"); A(f"v_mul_f32 {v(AR)}, {f32hex(-L2E)}, {v(AR)}")
    A(f"v_mul_f32 {v(AI)}, {v(pAI)}, {v(pDT)}"); A(f"v_mul_f32 {v(AI)}, {f32hex(1.0/(2*math.pi))}, {v(AI)}")
    A(f"v_mul_f32 {v(CR)}, {v(pCR)}, {v(pDT)}"); A(f"v_add_f32 {v(CR)}, {v(CR)}, {v(CR)}")
    A(f"v_mul_f32 {v(CI_)}, {v(pCI)}, {v(pDT)}"); A(f"v_add_f32 {v(CI_)}, {v(CI_)}, {v(CI_)}")
    vOW = 5; vOR = 6
    A(f"v_lshlrev_b32 {v(vOW)}, 3, {v(vLane)}"); A(f"v_add_u32 {v(vOW)}, {s(sTB)}, {v(vOW)}")
    A(f"v_and_b32 {v(vT)}, 15, {v(vLane)}"); A(f"v_mul_u32_u24 {v(vOR)}, {ROWB}, {v(vT)}")
    A(f"v_lshrrev_b32 {v(vT)}, 4, {v(vLane)}"); A(f"v_lshl_add_u32 {v(vOR)}, {v(vT)}, 4, {v(vOR)}"); A(f"v_add_u32 {v(vOR)}, {s(sTB)}, {v(vOR)}")
    WB = 32; XA = 64; KACC = 96
    TMP = 112
    cnt = [0]
    def cexp_row(p, row, withc):
        b = TMP + 8 * (cnt[0] % 4); cnt[0] += 1
        m, ph, c_, s_, re, im = b, b + 1, b + 2, b + 3, b + 4, b + 5
        o = [f"v_mul_f32 {v(m)}, {f32hex(float(p))}, {v(AR)}", f"v_mul_f32 {v(ph)}, {f32hex(float(p))}, {v(AI)}",
             f"v_exp_f32 {v(m)}, {v(m)}", f"v_fract_f32 {v(ph)}, {v(ph)}",
             f"v_cos_f32 {v(c_)}, {v(ph)}", f"v_sin_f32 {v(s_)}, {v(ph)}"]
        if not withc:
            o += [f"v_mul_f32 {v(re)}, {v(m)}, {v(c_)}", f"v_mul_f32 {v(im)}, {v(m)}, {v(s_)}"]
        else:
            o += [f"v_mul_f32 {v(re)}, {v(CR)}, {v(c_)}", f"v_mul_f32 {v(im)}, {v(CR)}, {v(s_)}",
                  f"v_fma_f32 {v(re)}, -{v(CI_)}, {v(s_)}, {v(re)}", f"v_fma_f32 {v(im)}, {v(CI_)}, {v(c_)}, {v(im)}",
                  f"v_mul_f32 {v(re)}, {v(m)}, {v(re)}", f"v_mul_f32 {v(im)}, -{v(m)}, {v(im)}"]
        o.append(f"ds_write_b64 {v(vOW)}, {v(re,2)} offset:{row*ROWB}")
        return o
    def zip2(a_, b_):
        o = []
        for i in range(max(len(a_), len(b_))):
            if i < len(a_): o.append(a_[i])
            if i < len(b_): o.append(b_[i])
        return o
    def rows_code(ps, withc):
        o = []
        for i in range(0, len(ps), 2):
            x = cexp_row(ps[i], i, withc)
            if i + 1 < len(ps): x = zip2(x, cexp_row(ps[i + 1], i + 1, withc))
            o += x
        return o
    t0 = [128 * (g >> 1) + (g & 1) + 2 * e for g in range(4) for e in range(4)]
    t1 = [b + 128 * e for b in (512, 516, 1024, 1536) for e in range(4)]
    t2 = [b + 2 * e for b in (256, 384) for e in range(4)] + [2048]
    for i in rows_code([8 * j for j in range(16)], False): A(i)
    for s_ in range(8): A(f"ds_read_b128 {v(WB+4*s_,4)}, {v(vOR)} offset:{64*s_}")
    for i in rows_code(t0, True): A(i)
    tiles = [t0, t1, t2]
    for t in range(3):
        for s_ in range(8): A(f"ds_read_b128 {v(XA+4*s_,4)}, {v(vOR)} offset:{64*s_}")
        mf = []
        for k in range(32):
            acc = KACC + 4 * t
            mf.append(f"{MF32} {v(acc,4)}, {v(XA+k)}, {v(WB+k)}, {'0' if k == 0 else v(acc,4)}")
        nxt = rows_code(tiles[t + 1], True) if t < 2 else []
        if t == 2:
            A(f"v_lshlrev_b32 {v(vT)}, 1, {v(vTid)}")
            for i in range(8):
                nxt.append(f"ds_write_b16 {v(vT)}, {v(U+i)} offset:{UOFF + 32 + 512*i}")
                nxt.append(f"ds_write_b16_d16_hi {v(vT)}, {v(U+i)} offset:{UOFF + USZ + 32 + 512*i}")
        per = (len(nxt) + 31) // 32; fi = 0
        for k in range(32):
            A(mf[k])
            for _ in range(per):
                if fi < len(nxt): A(nxt[fi]); fi += 1
    vK = 7
    A(f"v_and_b32 {v(vT)}, 15, {v(vLane)}"); A(f"v_lshlrev_b32 {v(vT)}, 5, {v(vT)}"); A(f"v_add_u32 {v(vT)}, {s(sTB)}, {v(vT)}")
    A(f"v_lshrrev_b32 {v(vT2)}, 5, {v(vLane)}"); A(f"v_bfe_u32 {v(vT3)}, {v(vLane)}, 4, 1")
    A(f"v_lshl_add_u32 {v(vK)}, {v(vT2)}, 9, {v(vT)}"); A(f"v_lshl_add_u32 {v(vK)}, {v(vT3)}, 2, {v(vK)}")
    for e in range(4): A(f"ds_write_b32 {v(vK)}, {v(KACC+e)} offset:{8*e}")
    A(f"v_mul_u32_u24 {v(vT4)}, 7, {v(vT2)}"); A(f"v_add_u32 {v(vT4)}, 4, {v(vT4)}")
    A(f"v_lshlrev_b32 {v(vT4)}, {v(vT4)}, {v(vT3)}")
    A(f"v_lshl_add_u32 {v(vK)}, {v(vT2)}, 11, {v(vT)}"); A(f"v_add_u32 {v(vK)}, {v(vK)}, {v(vT4)}")
    for e in range(4): A(f"ds_write_b32 {v(vK)}, {v(KACC+4+e)} offset:{2048 + 512*e}")
    A(f"v_mul_u32_u24 {v(vK)}, {1792*4}, {v(vT2)}"); A(f"v_lshl_add_u32 {v(vK)}, {v(vT3)}, 9, {v(vK)}"); A(f"v_add_u32 {v(vK)}, {v(vK)}, {v(vT)}")
    A("s_mov_b32 exec_hi, 0xffff")
    for e in range(4): A(f"ds_write_b32 {v(vK)}, {v(KACC+8+e)} offset:{1024 + 8*e}")
    A("s_mov_b32 exec_hi, -1")
    A("s_waitcnt lgkmcnt(0)"); A("s_barrier")
    A(f"s_lshr_b32 s4, {s(sW)}, 1"); A(f"s_mul_i32 s5, s4, {2*TREG}"); A(f"s_mul_i32 s6, s4, {KSZ}"); A(f"s_add_u32 s6, s6, {KOFF}")
    A(f"v_and_b32 {v(vT)}, 127, {v(vTid)}"); A(f"v_lshlrev_b32 {v(vT2)}, 3, {v(vT)}")
    A(f"v_lshl_add_u32 {v(vT3)}, {v(vT)}, 4, s6")
    G = 32; PP = 8
    for i in range(2):
        for e in range(8):
            k = 8 * i + e
            A(f"v_sub_u32 {v(PP+k)}, {2047 - 1024*i - e}, {v(vT2)}"); A(f"v_cvt_f32_u32 {v(PP+k)}, {v(PP+k)}")
    for k in range(0, 16, 2):
        A(f"v_cvt_pk_bf16_f32 {v(vT4)}, {v(PP+k)}, {v(PP+k+1)}")
        A(f"v_lshlrev_b32 {v(PP+k)}, 16, {v(vT4)}"); A(f"v_and_b32 {v(PP+k+1)}, 0xffff0000, {v(vT4)}")
    for k in range(16):
        A(f"v_cvt_u32_f32 {v(PP+k)}, {v(PP+k)}"); A(f"v_lshl_add_u32 {v(PP+k)}, {v(PP+k)}, 2, s5")
        A(f"ds_read2st64_b32 {v(G+2*k,2)}, {v(PP+k)} offset0:0 offset1:{TREG//256}")
    for k in range(16): A(f"v_add_f32 {v(G+2*k)}, {v(G+2*k)}, {v(G+2*k+1)}")
    for k in range(8): A(f"v_cvt_pk_bf16_f32 {v(PP+k)}, {v(G+4*k)}, {v(G+4*k+2)}")
    A(f"ds_write_b128 {v(vT3)}, {v(PP,4)}"); A(f"ds_write_b128 {v(vT3)}, {v(PP+4,4)} offset:2048")
    A("s_waitcnt lgkmcnt(0)"); A("s_barrier")
    Y = 128; FA = [0, 64]
    vUA = vT; vKB = vT2
    A(f"s_and_b32 s7, {s(sW)}, 1"); A("s_lshl_b32 s7, s7, 8")
    A(f"s_mul_i32 s5, s4, {USZ}"); A(f"s_add_u32 s5, s5, {UOFF + 2}"); A("s_add_u32 s5, s5, s7")
    A(f"s_add_u32 s6, s6, {2*2032 - 512*7}"); A("s_add_u32 s6, s6, s7")
    A(f"v_and_b32 {v(vT3)}, 15, {v(vLane)}"); A(f"v_lshrrev_b32 {v(vT4)}, 4, {v(vLane)}")
    A(f"v_lshlrev_b32 {v(vUA)}, 1, {v(vT3)}"); A(f"v_lshl_add_u32 {v(vUA)}, {v(vT4)}, 4, {v(vUA)}"); A(f"v_add_u32 {v(vUA)}, s5, {v(vUA)}")
    A(f"v_lshlrev_b32 {v(vKB)}, 4, {v(vT4)}"); A(f"v_lshlrev_b32 {v(vT3)}, 5, {v(vT3)}"); A(f"v_sub_u32 {v(vKB)}, {v(vKB)}, {v(vT3)}"); A(f"v_add_u32 {v(vKB)}, s6, {v(vKB)}")
    def cloads(sg):
        b = FA[sg % 2]; o = []
        for n in range(8):
            o.append(f"ds_read_b128 {v(b+4*n,4)}, {v(vUA)} offset:{n*512 + sg*64}")
            o.append(f"ds_read_b128 {v(b+32+4*n,4)}, {v(vKB)} offset:{(7-n)*512 + sg*64}")
        return o
    for i in cloads(0): A(i)
    for sg in range(4):
        b = FA[sg % 2]
        mf = []
        for top in range(8):
            for n in range(top + 1):
                for mu in range(top + 1):
                    if max(n, mu) == top and n + mu <= 7:
                        i = n + mu
                        first = (sg == 0) and not any(m_[0] == i for m_ in mf)
                        mf.append((i, f"{MF} {v(Y+4*i,4)}, {v(b+4*n,4)}, {v(b+32+4*mu,4)}, {'0' if first else v(Y+4*i,4)}"))
        nxt = cloads(sg + 1) if sg < 3 else []
        fi = 0
        for k, (_, t_) in enumerate(mf):
            A(t_)
            if k >= 18 and fi < len(nxt): A(nxt[fi]); fi += 1
        while fi < len(nxt): A(nxt[fi]); fi += 1
    A(f"v_and_b32 {v(vT3)}, 15, {v(vLane)}"); A(f"v_lshlrev_b32 {v(vT3)}, 6, {v(vT3)}"); A(f"v_lshl_add_u32 {v(vT3)}, {v(vT4)}, 4, {v(vT3)}"); A(f"v_add_u32 {v(vT3)}, {s(sTB)}, {v(vT3)}")
    for i in range(8): A(f"ds_write_b128 {v(vT3)}, {v(Y+4*i,4)} offset:{1024*i}")
    A("s_waitcnt lgkmcnt(0)"); A("s_barrier")
    A(f"v_lshlrev_b32 {v(vT)}, 2, {v(vTid)}")
    for i in range(8):
        A(f"ds_read2st64_b32 {v(4*i,2)}, {v(vT)} offset0:{4*i} offset1:{4*i + TREG//256}")
        A(f"ds_read2st64_b32 {v(4*i+2,2)}, {v(vT)} offset0:{4*i + 2*TREG//256} offset1:{4*i + 3*TREG//256}")
    A(f"v_and_b32 {v(vD1)}, 0xffff0000, {v(vD)}"); A(f"v_lshlrev_b32 {v(vD)}, 16, {v(vD)}")
    A(f"v_lshlrev_b32 {v(vT3)}, 11, {v(vTid)}"); A(f"s_lshl_b32 s6, {s(sD0)}, 1")
    for i in range(8):
        b = 4 * i; t = 32 + 4 * i
        A(f"v_add_f32 {v(b)}, {v(b)}, {v(b+1)}"); A(f"v_add_f32 {v(b+2)}, {v(b+2)}, {v(b+3)}")
        A(f"v_cvt_pk_bf16_f32 {v(b)}, {v(b)}, {v(b+2)}")
        A(f"v_lshlrev_b32 {v(t)}, 16, {v(U+i)}"); A(f"v_and_b32 {v(t+1)}, 0xffff0000, {v(U+i)}")
        A(f"v_mul_f32 {v(t)}, {v(t)}, {v(vD)}"); A(f"v_mul_f32 {v(t+1)}, {v(t+1)}, {v(vD1)}")
        A(f"v_cvt_pk_bf16_f32 {v(t)}, {v(t)}, {v(t+1)}")
        A(f"v_lshlrev_b32 {v(b+1)}, 16, {v(b)}"); A(f"v_and_b32 {v(b+2)}, 0xffff0000, {v(b)}")
        A(f"v_lshlrev_b32 {v(t+1)}, 16, {v(t)}"); A(f"v_and_b32 {v(t+2)}, 0xffff0000, {v(t)}")
        A(f"v_add_f32 {v(b+1)}, {v(b+1)}, {v(t+1)}"); A(f"v_add_f32 {v(b+2)}, {v(b+2)}, {v(t+2)}")
        A(f"v_cvt_pk_bf16_f32 {v(b)}, {v(b+1)}, {v(b+2)}")
        if i: A(f"s_add_u32 s6, s6, {256*2048}")
        A(f"buffer_store_dword {v(b)}, {v(vT3)}, s[36:39], s6 offen")
    A("s_endpgm")
```

```python
import sys
sys.path.insert(0, "gen")
from common import *
import k1, k2

def build(kernels, out_path, verbose=True):
    hdr = open("concat_heads__ssm_conv_s4d__compressed_kv_cla__prompt.s.ref").read().split("\n")
    head = [l for l in hdr if l.startswith(";") and "@launch" not in l and "Override launch" not in l and "grid=ceil" not in l]
    lines = list(head)
    for (name, fn, grid, block, lds) in kernels:
        lines.append(f"; @launch kernel={name} grid=({grid},1,1) block=({block},1,1) lds={lds}")
    lines.append('.amdgcn_target "amdgcn-amd-amdhsa--gfx950"')
    lines.append(".text")
    body = ""; desc = ""
    for (name, fn, grid, block, lds) in kernels:
        A = Asm()
        d = fn(A, name)
        if verbose: print("kernel", name, len(A.ins), "lines")
        A.ins = fix_hazards(A.ins, verbose=verbose)
        errs = check_waits(A.ins, [name])
        for e in errs: print("  WAIT ERROR:", e)
        assert not errs
        body += A.text(); desc += ".p2align 6\n" + d
    txt = "\n".join(lines) + "\n" + body + '.section .rodata,"a"\n' + desc
    open(out_path, "w").write(txt)
    return txt

if __name__ == "__main__":
    out = sys.argv[1]; which = sys.argv[2].split(","); opt = tuple(sys.argv[3:])
    K = {"k1": ("k1_kernel", lambda A, n: k1.gen_k1(A, n, opt), 256, 512, k1.K1_LDS),
         "k2": ("k2_kernel", lambda A, n: k2.gen_k2(A, n, opt), 256, 512, k2.K2_LDS)}
    try:
        import k3
        K["k3"] = ("k3_kernel", lambda A, n: k3.gen_k3(A, n, opt), k3.GRID, k3.BLOCK, k3.K3_LDS)
    except ImportError: pass
    build([K[w] for w in which], out, verbose=("v" in opt))
```

```python
from dsl import *
MB = 1 << 20
KF_OFF = 0
VF_OFF = 16 * MB
XF_OFF = 32 * MB
UT_OFF = 34 * MB
CTX_OFF = 36 * MB
WS_BYTES = 268435456
ARG = dict(u=0, logA=8, Aim=16, Cre=24, Cim=32, logdt=40, Dskip=48, x=56, ckv=64, wq=72, wuk=80, wuv=88, wo=96, out=104, dbg=112, ws=120)

def kernel_header(A, name):
    A.raw(f".globl {name}"); A.raw(".p2align 8"); A.raw(f".type {name},@function"); A.label(name)
    A.clear_state()

def descriptor(name, vgpr, sgpr=102, accum=None):
    accum = accum or ((vgpr + 3) // 4 * 4)
    return f""".amdhsa_kernel {name}
  .amdhsa_next_free_vgpr {vgpr}
  .amdhsa_next_free_sgpr {sgpr}
  .amdhsa_accum_offset {accum}
  .amdhsa_group_segment_fixed_size 0
  .amdhsa_kernarg_size 128
  .amdhsa_user_sgpr_count 2
  .amdhsa_user_sgpr_kernarg_segment_ptr 1
  .amdhsa_system_sgpr_workgroup_id_x 1
.end_amdhsa_kernel
"""

def mk_srd(A, sd, sp, nbytes):
    A(f"s_mov_b32 {s(sd)}, {s(sp)}")
    A(f"s_mov_b32 {s(sd+1)}, {s(sp+1)}")
    A(f"s_mov_b32 {s(sd+2)}, {hex(nbytes)}")
    A(f"s_mov_b32 {s(sd+3)}, 0x00020000")

class Stream:
    def __init__(self, A, ring_base, nbuf, lookahead):
        self.A = A; self.rb = ring_base; self.nbuf = nbuf; self.la = lookahead
        self.uses = []
        self.issued = 0; self.done = 0
    def add(self, reads, mfma, pre=None, post=None):
        self.uses.append(dict(reads=reads, mfma=mfma, pre=pre or [], post=post or []))
    def buf(self, i): return self.rb + 4 * (i % self.nbuf)
    def issue_upto(self, n):
        n = min(n, len(self.uses))
        while self.issued < n:
            u = self.uses[self.issued]
            for t in u["reads"](self.buf(self.issued)): self.A(t)
            self.issued += 1
    def run(self, count, fillers=()):
        fillers = list(fillers); nf = len(fillers); fi = 0
        for j in range(count):
            i = self.done
            self.issue_upto(i + 1)
            u = self.uses[i]
            for t in u["pre"]: self.A(t)
            self.A(u["mfma"](self.buf(i)))
            self.done += 1
            self.issue_upto(i + 1 + self.la)
            for t in u["post"]: self.A(t)
            want = (nf * (j + 1) + count - 1) // count
            while fi < want:
                self.A(fillers[fi]); fi += 1
        while fi < nf:
            self.A(fillers[fi]); fi += 1

class Stamps:
    def __init__(self, A, on, sbase=64):
        self.A = A; self.on = on; self.n = 0; self.sb = sbase
    def start(self):
        if self.on: self.A(f"s_memrealtime s[{self.sb-2}:{self.sb-1}]")
        self.stamp()
    def stamp(self):
        if not self.on: return
        self.A(f"s_memtime s[{self.sb+2*self.n}:{self.sb+2*self.n+1}]"); self.A("s_waitcnt lgkmcnt(0)"); self.n += 1
    def dump(self, srd, s_wid, nw, off, vt, vt2, stmp=4, extra=0):
        if not self.on: return
        A = self.A; sb = self.sb
        A("s_waitcnt vmcnt(0)"); self.stamp()
        A(f"s_memrealtime s[{sb-4}:{sb-3}]"); A("s_waitcnt lgkmcnt(0)"); A(f"s_sub_u32 s{sb-4}, s{sb-4}, s{sb-2}")
        for i in range(self.n + extra): A(f"v_writelane_b32 {v(vt)}, s{sb+2*i}, {i}")
        A(f"v_writelane_b32 {v(vt)}, s{sb-4}, 15")
        A(f"v_writelane_b32 {v(vt)}, s{sb-2}, 14")
        A(f"s_getreg_b32 s{stmp}, hwreg(HW_REG_HW_ID)"); A(f"v_writelane_b32 {v(vt)}, s{stmp}, 13")
        A(f"s_getreg_b32 s{stmp}, hwreg(HW_REG_XCC_ID)"); A(f"v_writelane_b32 {v(vt)}, s{stmp}, 12")
        A(f"s_mul_i32 s{stmp}, s2, {nw}"); A(f"s_add_u32 s{stmp}, s{stmp}, s{s_wid}"); A(f"s_lshl_b32 s{stmp}, s{stmp}, 8"); A(f"s_add_u32 s{stmp}, s{stmp}, {off}")
        A(f"v_mbcnt_lo_u32_b32 {v(vt2)}, -1, 0"); A(f"v_mbcnt_hi_u32_b32 {v(vt2)}, -1, {v(vt2)}"); A(f"v_lshlrev_b32 {v(vt2)}, 2, {v(vt2)}")
        A(f"buffer_store_dword {v(vt)}, {v(vt2)}, {s(srd,4)}, s{stmp} offen")
```

```python
import re
from collections import deque

def v(i, n=1): return f"v{i}" if n == 1 else f"v[{i}:{i+n-1}]"
def s(i, n=1): return f"s{i}" if n == 1 else f"s[{i}:{i+n-1}]"
def a(i, n=1): return f"a{i}" if n == 1 else f"a[{i}:{i+n-1}]"

_REG = re.compile(r"^(-|\|)?(abs\()?([vsa])(?:(\d+)|\[(\d+):(\d+)\])\)?\|?$")
TRANS = ("v_exp_f32", "v_log_f32", "v_rcp_f32", "v_rsq_f32", "v_sqrt_f32", "v_sin_f32", "v_cos_f32", "v_rcp_iflag_f32")

def regs_of(tok):
    tok = tok.strip()
    if tok in ("vcc",): return [("s", 106), ("s", 107)]
    if tok == "vcc_lo": return [("s", 106)]
    if tok == "vcc_hi": return [("s", 107)]
    if tok == "exec": return [("s", 126), ("s", 127)]
    if tok == "exec_lo": return [("s", 126)]
    if tok == "exec_hi": return [("s", 127)]
    if tok == "m0": return [("s", 124)]
    m = _REG.match(tok)
    if not m: return []
    k = m.group(3)
    if m.group(4) is not None: return [(k, int(m.group(4)))]
    return [(k, i) for i in range(int(m.group(5)), int(m.group(6)) + 1)]

def split_ops(rest):
    out, depth, cur = [], 0, ""
    for ch in rest:
        if ch == "[": depth += 1
        if ch == "]": depth -= 1
        if ch == "," and depth == 0:
            out.append(cur.strip()); cur = ""
        else: cur += ch
    if cur.strip(): out.append(cur.strip())
    return out

class Inst:
    __slots__ = ("text", "op", "dst", "src", "kind", "srcA", "srcB", "srcC", "passes", "target", "states", "data", "tag", "nopfix")
    def __init__(self, text):
        self.text = text; self.dst = []; self.src = []; self.srcA = self.srcB = self.srcC = []
        self.passes = 0; self.target = None; self.states = 1; self.data = []; self.tag = None; self.nopfix = False
        t = text.split(";")[0].strip()
        if t.endswith(":"):
            self.kind = "label"; self.op = t[:-1]; self.states = 0; return
        if t.startswith(".") or not t:
            self.kind = "dir"; self.op = t; self.states = 0; return
        parts = t.split(None, 1)
        op = parts[0]; self.op = op
        rest = parts[1] if len(parts) > 1 else ""
        ops = split_ops(rest)
        mods = []
        if ops:
            last = ops[-1].split()
            ops[-1] = last[0]; mods = last[1:]
        R = [regs_of(o) for o in ops]
        flat = lambda L: [x for l in L for x in l]
        if op.startswith("v_mfma"):
            self.kind = "mfma"; self.dst = R[0]; self.srcA, self.srcB, self.srcC = R[1], R[2], R[3]
            self.src = flat(R[1:])
            if "32x32x16" in op or "32x32x8" in op: self.passes = 8
            elif "16x16x32" in op or "16x16x16" in op: self.passes = 4
            elif "4x4x4" in op: self.passes = 2
            elif "16x16x4_f32" in op: self.passes = 8
            else: raise ValueError("mfma passes? " + op)
        elif op.startswith("v_cmp"):
            self.kind = "valu"; self.dst = R[0]; self.src = flat(R[1:])
            if op.startswith("v_cmpx"): self.dst = self.dst + regs_of("exec")
        elif op.startswith("v_permlane") and "swap" in op:
            self.kind = "valu"; self.dst = flat(R); self.src = flat(R)
        elif op in ("v_add_co_u32", "v_sub_co_u32", "v_subrev_co_u32"):
            self.kind = "valu"; self.dst = R[0] + R[1]; self.src = flat(R[2:])
        elif op in ("v_addc_co_u32", "v_subb_co_u32"):
            self.kind = "valu"; self.dst = R[0] + R[1]; self.src = flat(R[2:])
        elif op == "v_nop":
            self.kind = "valu"
        elif op.startswith("v_"):
            self.kind = "trans" if op.replace("_e32", "").replace("_e64", "") in TRANS else "valu"
            self.dst = R[0]; self.src = flat(R[1:])
            if op.startswith("v_fmac") or op.startswith("v_pk_fmac") or op.startswith("v_dot2c") or op.startswith("v_writelane") : self.src = self.src + R[0]
            if any(m.startswith("dst_unused:UNUSED_PRESERVE") or m.startswith("op_sel") for m in mods): self.src = self.src + R[0]
        elif op.startswith("ds_read") or op.startswith("ds_bpermute") or op.startswith("ds_permute") or op.startswith("ds_swizzle"):
            self.kind = "ds_read"; self.dst = R[0]; self.src = flat(R[1:])
            if "d16" in op: self.src = self.src + R[0]
        elif op.startswith("ds_write") or op.startswith("ds_add") or op.startswith("ds_max"):
            self.kind = "ds_write"; self.src = flat(R)
        elif op.startswith("buffer_load") or op.startswith("global_load"):
            if "lds" in mods or "_lds_" in op:
                self.kind = "dma"; self.src = flat(R) + regs_of("m0")
            else:
                self.kind = "vload"; self.dst = R[0]; self.src = flat(R[1:])
                if "d16" in op: self.src = self.src + R[0]
        elif op.startswith("buffer_store"):
            self.kind = "vstore"; self.src = flat(R); self.data = R[0] if ("x3" in op or "x4" in op) else []
        elif op.startswith("global_store"):
            self.kind = "vstore"; self.src = flat(R); self.data = R[1] if ("x3" in op or "x4" in op) else []
        elif op.startswith("buffer_atomic") or op.startswith("global_atomic"):
            self.kind = "vstore"; self.src = flat(R)
            if "sc0" in mods: self.kind = "vload"; self.dst = R[0]
        elif op in ("buffer_wbl2", "buffer_inv"):
            self.kind = "vstore"
        elif op.startswith("s_load") or op.startswith("s_buffer_load") or op in ("s_memtime", "s_memrealtime"):
            self.kind = "smem"; self.dst = R[0]; self.src = flat(R[1:])
        elif op == "s_waitcnt":
            self.kind = "wait"
        elif op == "s_nop":
            self.kind = "nop"; self.states = int(ops[0], 0) + 1
        elif op == "s_barrier":
            self.kind = "barrier"
        elif op == "s_endpgm":
            self.kind = "end"
        elif op == "s_branch":
            self.kind = "branch"; self.target = ops[0]
        elif op.startswith("s_cbranch"):
            self.kind = "cbranch"; self.target = ops[0]
            if "vcc" in op: self.src = regs_of("vcc")
        elif op.startswith("s_cmp") or op.startswith("s_bitcmp"):
            self.kind = "salu"; self.src = flat(R)
        elif op in ("s_setprio", "s_sleep", "s_setreg_imm32_b32", "s_sethalt"):
            self.kind = "salu"
        elif op.startswith("s_") :
            self.kind = "salu"; self.dst = R[0] if R else []; self.src = flat(R[1:])
            if "saveexec" in op: self.dst = self.dst + regs_of("exec"); self.src = self.src + regs_of("exec")
            if op in ("s_addk_i32", "s_mulk_i32"): self.src = self.src + R[0]
        else:
            raise ValueError("unknown instruction: " + text)

    def waits(self):
        vm = re.search(r"vmcnt\((\d+)\)", self.text); lg = re.search(r"lgkmcnt\((\d+)\)", self.text)
        return (int(vm.group(1)) if vm else None, int(lg.group(1)) if lg else None)

XDL_AB = {2: 5, 4: 8, 8: 12, 16: 20}
XDL_C = {2: 4, 4: 6, 8: 10, 16: 18}
XDL_WAR = {2: 1, 4: 3, 8: 7, 16: 15}

def need_states(p, c):
    n = 0
    pv = p.kind in ("valu", "trans"); cv = c.kind in ("valu", "trans")
    pd = set(p.dst)
    if pv:
        vd = {r for r in pd if r[0] in "va"}; sd = {r for r in pd if r[0] == "s"}
        if c.kind == "mfma" and vd & set(c.src): n = max(n, 2)
        if p.kind == "trans" and c.kind == "valu" and vd & set(c.src): n = max(n, 1)
        if c.op.startswith("v_readfirstlane") or c.op.startswith("v_readlane"):
            if vd & set(c.src): n = max(n, 1)
            if sd & set(c.src): n = max(n, 4)
        if c.op.startswith("v_permlane") and vd & set(c.src): n = max(n, 2)
        if "dpp" in c.text or "row_" in c.text or "quad_perm" in c.text:
            if cv and vd & set(c.src): n = max(n, 2)
        if sd:
            if cv:
                srcs = set(c.src)
                if c.op.startswith("v_cndmask") and not c.text.count("s[") and "vcc" in c.text: srcs |= set(regs_of("vcc"))
                if sd & srcs: n = max(n, 2)
            if c.kind in ("vload", "vstore", "dma") and sd & set(c.src): n = max(n, 5)
            if ("s", 126) in sd:
                if c.kind == "mfma": n = max(n, 4)
                if c.op.startswith("v_permlane") or c.op.startswith("v_read"): n = max(n, 4)
        if ("op_sel" in p.text or "sdwa" in p.text or "dst_sel" in p.text) and cv and vd & (set(c.src) | set(c.dst)): n = max(n, 1)
    if p.kind == "mfma":
        ps = p.passes
        if c.kind == "mfma":
            if pd & (set(c.srcA) | set(c.srcB)): n = max(n, XDL_AB[ps])
            if pd & set(c.srcC):
                if c.srcC == p.dst and c.passes == ps: n = max(n, 2 if ps == 2 else 0)
                else: n = max(n, XDL_C[ps])
            elif pd & set(c.dst): n = max(n, XDL_C[ps])
        elif cv:
            if pd & (set(c.src) | set(c.dst)): n = max(n, XDL_AB[ps])
            if set(p.srcC) & set(c.dst): n = max(n, XDL_WAR[ps])
        elif c.kind in ("vload", "vstore", "dma", "ds_read", "ds_write"):
            if pd & (set(c.src) | set(c.dst)): n = max(n, XDL_AB[ps])
            if set(p.srcC) & set(c.dst): n = max(n, XDL_WAR[ps])
    if p.kind == "vstore" and p.data:
        if set(p.data) & set(c.dst): n = max(n, 2 if cv or c.kind == "mfma" else 1)
    if p.kind == "salu" and ("s", 124) in pd and c.kind == "dma": n = max(n, 1)
    return n

class Asm:
    def __init__(self):
        self.ins = []
        self.lq = []
        self.vq = []
        self.auto = True
        self.nlabel = 0
        self.curtag = None
    def raw(self, text):
        self.ins.append(Inst(text)); return self.ins[-1]
    def label(self, name): self.raw(name + ":")
    def newlabel(self, p="L"):
        self.nlabel += 1; return f"{p}_{self.nlabel}"
    def _autowait(self, i):
        touched = set(i.src) | set(i.dst)
        nl = None; nv = None
        for k, d in enumerate(self.lq):
            if d and d & touched: nl = len(self.lq) - 1 - k
        for k, d in enumerate(self.vq):
            if d and d & touched: nv = len(self.vq) - 1 - k
        if nl is not None or nv is not None: self.wait(vm=nv, lgkm=nl)
    def wait(self, vm=None, lgkm=None):
        parts = []
        if vm is not None:
            vm = min(vm, 63); parts.append(f"vmcnt({vm})")
            if len(self.vq) > vm: self.vq = self.vq[len(self.vq) - vm:] if vm else []
        if lgkm is not None:
            if any(isinstance(d, _Smem) for d in self.lq): lgkm = 0
            lgkm = min(lgkm, 15); parts.append(f"lgkmcnt({lgkm})")
            if len(self.lq) > lgkm: self.lq = self.lq[len(self.lq) - lgkm:] if lgkm else []
        self.raw("s_waitcnt " + " ".join(parts))
    def __call__(self, text):
        for line in text.split("\n"):
            line = line.strip()
            if not line: continue
            if line.startswith("@waittag"):
                self.wait_tag(line.split()[1]); continue
            if line.startswith("@tag"):
                self.curtag = line.split()[1] if len(line.split()) > 1 else None; continue
            i = Inst(line)
            if i.kind == "wait":
                vm, lg = i.waits(); self.wait(vm, lg); continue
            if self.auto and i.kind not in ("label", "dir"): self._autowait(i)
            self.ins.append(i)
            if i.kind in ("ds_read",): self.lq.append(frozenset(i.dst))
            elif i.kind == "ds_write": self.lq.append(frozenset())
            elif i.kind == "smem": self.smem_pending(i)
            elif i.kind == "vload": self.vq.append(_Tag(i.dst, self.curtag))
            elif i.kind in ("vstore", "dma"): self.vq.append(_Tag((), self.curtag))
    def wait_regs(self, regs):
        class _D: pass
        d = _D(); d.src = list(regs); d.dst = []
        self._autowait(d)
    def wait_tag(self, tag):
        n = None
        for k, d in enumerate(self.vq):
            if d.tag == tag: n = len(self.vq) - 1 - k
        if n is not None: self.wait(vm=n)
    def smem_pending(self, i):
        self.lq.append(_Smem(i.dst))
    def state(self): return (list(self.lq), list(self.vq))
    def set_state(self, st): self.lq, self.vq = list(st[0]), list(st[1])
    def clear_state(self): self.lq, self.vq = [], []
    def text(self): return "\n".join(("" if i.kind in ("label", "dir") else "    ") + i.text for i in self.ins) + "\n"

class _Smem(frozenset):
    pass

class _Tag(frozenset):
    def __new__(cls, regs, tag):
        o = super().__new__(cls, regs); o.tag = tag; return o

def _patch_wait_for_smem():
    pass

def build_cfg(ins):
    lab = {i.op: k for k, i in enumerate(ins) if i.kind == "label"}
    succ = [[] for _ in ins]; pred = [[] for _ in ins]
    for k, i in enumerate(ins):
        nx = []
        if i.kind == "end": pass
        elif i.kind == "branch": nx = [lab[i.target]]
        elif i.kind == "cbranch": nx = [lab[i.target]] + ([k + 1] if k + 1 < len(ins) else [])
        elif k + 1 < len(ins): nx = [k + 1]
        succ[k] = nx
        for n in nx: pred[n].append(k)
    return succ, pred

def fix_hazards(ins, verbose=True, maxwin=20):
    total = 0
    while True:
        succ, pred = build_cfg(ins)
        fixes = {}
        for k, c in enumerate(ins):
            if c.kind in ("label", "dir", "nop", "wait", "barrier", "end", "branch"): continue
            stack = [(p, 0) for p in pred[k]]; seen = {}
            worst = 0
            while stack:
                j, d = stack.pop()
                if j in seen and seen[j] <= d: continue
                seen[j] = d
                p = ins[j]
                if p.kind not in ("label", "dir", "nop", "wait", "barrier", "branch", "cbranch"):
                    n = need_states(p, c)
                    if n > d: worst = max(worst, n - d)
                d2 = d + p.states
                if d2 < maxwin:
                    for q in pred[j]: stack.append((q, d2))
            if worst: fixes[k] = worst
        if not fixes: break
        last = -10**9
        for k in sorted(fixes):
            if k - last < maxwin + 4: del fixes[k]
            else: last = k
        out = []
        for k, i in enumerate(ins):
            if k in fixes:
                n = fixes[k]
                while n > 0:
                    m = min(n, 16); x = Inst(f"s_nop {m-1}"); x.nopfix = True; out.append(x); n -= m
                total += 1
                if verbose: print(f"  [hazard] s_nop x{fixes[k]} before: {i.text}")
            out.append(i)
        ins = out
    return ins

def check_waits(ins, entry_labels):
    succ, pred = build_cfg(ins)
    lab = {i.op: k for k, i in enumerate(ins) if i.kind == "label"}
    seen = {}
    work = deque()
    for e in entry_labels: work.append((lab[e], (), ()))
    errs = set(); nstates = 0
    while work:
        k, lq, vq = work.popleft()
        while True:
            i = ins[k]
            if i.kind == "label" or len(pred[k]) > 1:
                key = (lq, vq)
                st = seen.setdefault(k, set())
                if key in st: break
                st.add(key); nstates += 1
                if len(st) > 400: errs.add(f"too many states at {k} {i.text}"); break
            if i.kind == "wait":
                vm, lg = i.waits()
                if vm is not None and len(vq) > vm: vq = vq[len(vq) - vm:] if vm else ()
                if lg is not None:
                    if any(x[0] == "S" for x in lq):
                        if lg == 0: lq = ()
                    elif len(lq) > lg: lq = lq[len(lq) - lg:] if lg else ()
            elif i.kind not in ("label", "dir"):
                touched = set(i.src) | set(i.dst)
                for x in lq:
                    if set(x[1]) & touched: errs.add(f"LGKM not waited: [{k}] {i.text}")
                for x in vq:
                    if set(x[1]) & touched: errs.add(f"VM not waited: [{k}] {i.text}")
                if i.kind == "ds_read": lq = lq + (("L", tuple(i.dst)),)
                elif i.kind == "ds_write": lq = lq + (("L", ()),)
                elif i.kind == "smem": lq = lq + (("S", tuple(i.dst)),)
                elif i.kind == "vload": vq = vq + (("V", tuple(i.dst)),)
                elif i.kind in ("vstore", "dma"): vq = vq + (("V", ()),)
                if len(vq) > 63: vq = vq[-63:]
                if len(lq) > 40: lq = lq[-40:]
                while vq and not vq[0][1]: vq = vq[1:]
                while lq and not lq[0][1] and lq[0][0] == "L": lq = lq[1:]
            nx = succ[k]
            if not nx: break
            for n in nx[1:]: work.append((n, lq, vq))
            k = nx[0]
    return sorted(errs)
```

```python
from common import *

SLOT = 32768
NSLOT = 3
WSCR = NSLOT * SLOT
K1_LDS = WSCR + 65536

CHUNKS = [[(0, q), (1, q), (2, q), (3, q)] for q in range(4)] + \
         [[(4, 0), (5, 0), (4, 1), (5, 1)], [(4, 2), (5, 2), (4, 3), (5, 3)]] + \
         [[(6, q) for q in range(4)], [(7, q) for q in range(4)]]
ACCSET = {0: 0, 1: 1, 2: 2, 3: 3, 4: 0, 5: 1, 6: 2, 7: 3}
MF = "v_mfma_f32_16x16x32_bf16"

def gen_k1(A, name="k1_kernel", opt=()):
    kernel_header(A, name)
    W = 0
    ACC = 128
    RING = 192
    OST = 224
    vL16 = 232; vRD = 233; vRA = [234, 235]; vWG = 236; vWT = 238; vXG = 239; vXR = 240; vT = 241; vT2 = 242
    vDM = [243, 244, 245, 246]
    XFR = 248
    vUG = 247; vUR = 252; vUS = 253
    sW = 24; sTMP = 25; sCK = 26; sOUT = 27; sM0 = 28; sPART = 29; sR = 30; sH = 31; sWOFF = 32; sXO = 33; sG = 34; sWM = 35
    sCA = 52; sCB = 53; sCC = 54
    Ldone = name + "_done"
    nst = [0]
    def stamp():
        if "stamp" not in opt: return
        A(f"s_memtime s[{64+2*nst[0]}:{65+2*nst[0]}]"); A("s_waitcnt lgkmcnt(0)"); nst[0] += 1
    def dump_stamps():
        if "stamp" not in opt: return
        A("s_memrealtime s[92:93]"); A("s_waitcnt lgkmcnt(0)")
        A(f"s_sub_u32 s92, s92, s94")
        for i in range(nst[0]):
            A(f"v_writelane_b32 {v(vT)}, s{64+2*i}, {i}")
        A(f"v_writelane_b32 {v(vT)}, s92, 15")
        A("s_lshl_b32 s48, s2, 3"); A(f"s_add_u32 s48, s48, {s(sW)}"); A("s_lshl_b32 s48, s48, 8"); A(f"s_add_u32 s48, s48, {128*MB}")
        A(f"v_lshrrev_b32 {v(vT2)}, 2, {v(vL16)}")
        A(f"buffer_store_dword {v(vT)}, {v(vT2)}, s[16:19], s48 offen")
    A("s_cmp_ge_u32 s2, 256"); A(f"s_cbranch_scc1 {Ldone}")
    A(f"s_load_dwordx2 s[4:5], s[0:1], {ARG['ckv']}")
    A(f"s_load_dwordx4 s[36:39], s[0:1], {ARG['wuk']}")
    A(f"s_load_dwordx2 s[6:7], s[0:1], {ARG['ws']}")
    A(f"s_load_dwordx2 s[40:41], s[0:1], {ARG['x']}")
    A(f"s_load_dwordx2 s[56:57], s[0:1], {ARG['u']}")
    A(f"s_load_dwordx2 s[60:61], s[0:1], {ARG['wq']}")
    A(f"v_lshrrev_b32 {v(vT)}, 6, v0")
    A(f"v_and_b32 {v(vT2)}, 63, v0")
    A(f"v_readfirstlane_b32 {s(sW)}, {v(vT)}")
    A(f"v_lshlrev_b32 {v(vL16)}, 4, {v(vT2)}")
    A(f"s_and_b32 s42, s2, 7"); A("s_lshr_b32 s43, s2, 3"); A("s_and_b32 s44, s43, 3"); A(f"s_lshr_b32 {s(sR)}, s43, 2")
    A(f"s_lshr_b32 {s(sPART)}, s44, 1")
    A("s_lshl_b32 s45, s42, 2"); A("s_and_b32 s46, s44, 1"); A("s_lshl_b32 s46, s46, 1"); A("s_add_u32 s45, s45, s46")
    A(f"s_lshr_b32 s46, {s(sW)}, 2"); A(f"s_add_u32 {s(sH)}, s45, s46")
    A(f"s_and_b32 s47, {s(sW)}, 3")
    A(f"v_and_b32 {v(vXG)}, 15, {v(vT2)}"); A(f"v_lshlrev_b32 {v(vRD)}, 8, {v(vXG)}")
    A(f"v_lshrrev_b32 {v(vT)}, 4, {v(vT2)}"); A(f"v_xor_b32 {v(vXG)}, {v(vT)}, {v(vXG)}")
    A(f"v_lshl_add_u32 {v(vRD)}, {v(vXG)}, 4, {v(vRD)}")
    A(f"v_lshlrev_b32 {v(vXG)}, 4, {v(vXG)}")
    for j in range(4):
        A(f"v_xor_b32 {v(vDM[j])}, {64*j}, {v(vXG)}")
        A(f"v_lshl_add_u32 {v(vDM[j])}, {v(vT)}, 10, {v(vDM[j])}")
        if j: A(f"v_add_u32 {v(vDM[j])}, {3072*j}, {v(vDM[j])}")
    A(f"v_lshrrev_b32 {v(vT)}, 2, {v(vT2)}"); A(f"v_lshlrev_b32 {v(vWG)}, 13, {v(vT)}")
    A(f"v_lshrrev_b32 {v(vT)}, 5, {v(vT2)}"); A(f"v_lshlrev_b32 {v(vT)}, 1, {v(vT)}")
    A(f"v_and_b32 {v(vXG)}, 3, {v(vT2)}"); A(f"v_xor_b32 {v(vT)}, {v(vT)}, {v(vXG)}")
    A(f"v_lshl_add_u32 {v(vWG)}, {v(vT)}, 4, {v(vWG)}")
    A(f"s_lshl_b32 s48, {s(sH)}, 8"); A("s_lshl_b32 s49, s47, 6"); A("s_add_u32 s48, s48, s49")
    A(f"v_add_u32 {v(vWG)}, s48, {v(vWG)}")
    A(f"s_lshl_b32 {s(sWM)}, {s(sW)}, 13"); A(f"s_add_u32 {s(sWM)}, {s(sWM)}, {WSCR}")
    A(f"v_lshrrev_b32 {v(vT)}, 4, {v(vT2)}"); A(f"v_lshlrev_b32 {v(vWT)}, 9, {v(vT)}")
    A(f"v_bfe_u32 {v(vT)}, {v(vT2)}, 2, 2"); A(f"v_lshl_add_u32 {v(vWT)}, {v(vT)}, 6, {v(vWT)}")
    A(f"v_bfe_u32 {v(vT)}, {v(vT2)}, 4, 1"); A(f"v_lshl_add_u32 {v(vWT)}, {v(vT)}, 5, {v(vWT)}")
    A(f"v_and_b32 {v(vT)}, 3, {v(vT2)}"); A(f"v_lshl_add_u32 {v(vWT)}, {v(vT)}, 3, {v(vWT)}")
    A(f"v_add_u32 {v(vWT)}, {s(sWM)}, {v(vWT)}")
    A(f"v_xor_b32 {v(vWT-1)}, 32, {v(vWT)}")
    A(f"v_lshrrev_b32 {v(vT)}, 4, {v(vT2)}"); A(f"v_lshlrev_b32 {v(vXG)}, 10, {v(vT)}")
    A(f"v_and_b32 {v(vT)}, 15, {v(vT2)}"); A(f"v_lshl_add_u32 {v(vXG)}, {v(vT)}, 4, {v(vXG)}")
    A("s_lshr_b32 s48, s2, 2"); A("s_lshl_b32 s48, s48, 15"); A(f"s_lshl_b32 s49, {s(sW)}, 12"); A("s_add_u32 s48, s48, s49")
    A("s_and_b32 s49, s2, 3"); A("s_lshl_b32 s49, s49, 8"); A(f"s_add_u32 s50, s48, s49")
    A(f"v_and_b32 {v(vT)}, 15, {v(vT2)}"); A(f"v_lshlrev_b32 {v(vXR)}, 8, {v(vT)}")
    A(f"v_lshrrev_b32 {v(vT)}, 4, {v(vT2)}"); A(f"v_lshl_add_u32 {v(vXR)}, {v(vT)}, 4, {v(vXR)}")
    A(f"s_lshr_b32 s48, {s(sW)}, 2"); A("s_lshl_b32 s48, s48, 12"); A("s_lshl_b32 s49, s47, 6"); A("s_add_u32 s48, s48, s49")
    A(f"s_add_u32 s48, s48, {2*SLOT}"); A(f"v_add_u32 {v(vXR)}, s48, {v(vXR)}")
    A("s_lshr_b32 s48, s2, 2"); A("s_lshl_b32 s48, s48, 1"); A(f"s_lshr_b32 s49, {s(sW)}, 2"); A("s_add_u32 s48, s48, s49"); A("s_lshl_b32 s48, s48, 2")
    A("s_and_b32 s49, s2, 3"); A("s_lshl_b32 s49, s49, 9"); A("s_add_u32 s48, s48, s49"); A("s_add_u32 s48, s48, s47")
    A("s_lshl_b32 s48, s48, 10"); A(f"s_add_u32 {s(sXO)}, s48, {XF_OFF}")
    A(f"v_lshrrev_b32 {v(vT)}, 3, {v(vT2)}"); A(f"v_lshlrev_b32 {v(vUG)}, 10, {v(vT)}")
    A(f"v_and_b32 {v(vT)}, 7, {v(vT2)}"); A(f"v_lshl_add_u32 {v(vUG)}, {v(vT)}, 4, {v(vUG)}")
    A("s_lshl_b32 s48, s43, 16"); A(f"s_lshl_b32 s49, {s(sW)}, 13"); A("s_add_u32 s48, s48, s49"); A("s_lshl_b32 s49, s42, 7"); A("s_add_u32 s55, s48, s49")
    A(f"v_lshrrev_b32 {v(vT)}, 4, {v(vT2)}"); A(f"v_lshlrev_b32 {v(vUR)}, 10, {v(vT)}")
    A(f"v_bfe_u32 {v(vT)}, {v(vT2)}, 2, 2"); A(f"v_lshl_add_u32 {v(vUR)}, {v(vT)}, 7, {v(vUR)}")
    A(f"v_and_b32 {v(vT)}, 3, {v(vT2)}"); A(f"v_lshl_add_u32 {v(vUR)}, {v(vT)}, 3, {v(vUR)}")
    A(f"s_lshr_b32 s48, {s(sW)}, 2"); A("s_lshl_b32 s48, s48, 12"); A("s_lshl_b32 s49, s47, 5"); A("s_add_u32 s48, s48, s49"); A(f"s_add_u32 s48, s48, {WSCR + 8192}")
    A(f"v_add_u32 {v(vUR)}, s48, {v(vUR)}")
    A(f"v_and_b32 {v(vT)}, 15, {v(vT2)}"); A(f"v_lshlrev_b32 {v(vUS)}, 12, {v(vT)}")
    A(f"v_lshrrev_b32 {v(vT)}, 4, {v(vT2)}"); A(f"v_lshl_add_u32 {v(vUS)}, {v(vT)}, 4, {v(vUS)}")
    A("s_lshl_b32 s48, s42, 18"); A("s_lshl_b32 s49, s47, 16"); A("s_add_u32 s48, s48, s49"); A("s_lshl_b32 s49, s43, 7"); A("s_add_u32 s48, s48, s49")
    A(f"s_lshr_b32 s49, {s(sW)}, 2"); A("s_lshl_b32 s49, s49, 6"); A("s_add_u32 s48, s48, s49"); A(f"s_add_u32 s58, s48, {UT_OFF}")
    A(f"s_lshl_b32 {s(sCK)}, {s(sR)}, 18"); A(f"s_and_b32 s48, {s(sW)}, 1"); A("s_lshl_b32 s48, s48, 14"); A(f"s_add_u32 {s(sCK)}, {s(sCK)}, s48")
    A(f"s_lshr_b32 {s(sG)}, {s(sW)}, 1")
    A(f"s_lshl_b32 s48, {s(sG)}, 15"); A(f"s_add_u32 {s(sCA)}, {s(sCK)}, s48")
    A(f"s_and_b32 s48, {s(sG)}, 1"); A("s_lshl_b32 s48, s48, 15"); A(f"s_lshr_b32 s49, {s(sG)}, 1"); A("s_lshl_b32 s49, s49, 8")
    A("s_add_u32 s48, s48, s49"); A(f"s_add_u32 {s(sCB)}, {s(sCK)}, s48")
    A(f"s_lshl_b32 s48, {s(sG)}, 8"); A(f"s_add_u32 {s(sCC)}, {s(sCK)}, s48")
    A(f"s_lshl_b32 {s(sOUT)}, {s(sH)}, 19"); A(f"s_lshl_b32 s48, {s(sR)}, 16"); A(f"s_add_u32 {s(sOUT)}, {s(sOUT)}, s48")
    A("s_lshl_b32 s48, s47, 11"); A(f"s_add_u32 {s(sOUT)}, {s(sOUT)}, s48")
    A(f"s_lshl_b32 s48, {s(sPART)}, 24"); A(f"s_add_u32 {s(sOUT)}, {s(sOUT)}, s48")
    A(f"s_lshl_b32 {s(sM0)}, {s(sW)}, 12")
    A("s_waitcnt lgkmcnt(0)")
    mk_srd(A, 8, 4, 2048 * 1024)
    A(f"s_cmp_eq_u32 {s(sPART)}, 0")
    A("s_cselect_b32 s12, s36, s38"); A("s_cselect_b32 s13, s37, s39"); A(f"s_mov_b32 s14, {hex(512*8192)}"); A("s_mov_b32 s15, 0x00020000")
    mk_srd(A, 16, 6, WS_BYTES)
    mk_srd(A, 20, 40, 2048 * 1024)
    mk_srd(A, 44, 56, 2048 * 1024)
    A(f"s_mov_b32 s62, {hex(512*8192)}"); A("s_mov_b32 s63, 0x00020000")

    def dma_chunk(c):
        t0, q0 = CHUNKS[c][0]
        base = sCA if c < 4 else (sCB if c < 6 else sCC)
        out = [f"s_add_u32 {s(sTMP)}, {s(base)}, {t0 * 32768 + q0 * 256}"]
        for j in range(4):
            out.append(f"s_add_u32 m0, {s(sM0)}, {(c % NSLOT) * SLOT}\n@tag c{c}\nbuffer_load_dwordx4 {v(vDM[j])}, s[8:11], {s(sTMP)} offen offset:{1024*j} lds\n@tag")
        return out
    def wdma(k):
        out = []
        for hh in range(2):
            out.append(f"s_add_u32 m0, {s(sWM)}, {(k % 4) * 2048 + hh * 1024}\ns_mov_b32 {s(sWOFF)}, {(32*k+16*hh)*8192}\n"
                       f"@tag w{k}\nbuffer_load_dwordx4 {v(vWG)}, s[12:15], {s(sWOFF)} offen lds\n@tag")
        return out
    def wtrans(k):
        o = (k % 4) * 2048
        out = [f"@waittag w{k}"]
        for nt in range(2):
            for t in range(2):
                out.append(f"ds_read_b64_tr_b16 {v(W+8*k+4*nt+2*t,2)}, {v(vWT-nt)} offset:{o+256*t}")
        return out
    def prefetch():
        return [f"v_lshlrev_b32 {v(vXG)}, 3, {v(vL16)}\ns_lshr_b32 s48, s2, 3\ns_lshl_b32 s48, s48, 3\ns_add_u32 s48, s48, {s(sW)}\ns_lshl_b32 s49, s48, 13\ns_add_u32 s49, s49, {XF_OFF}\n"
                f"buffer_load_dword {v(vT)}, {v(vXG)}, s[16:19], s49 offen",
                f"v_bfe_u32 {v(vXR)}, {v(vL16)}, 7, 1\nv_lshlrev_b32 {v(vXR)}, 13, {v(vXR)}\nv_bfe_u32 {v(vXG)}, {v(vL16)}, 4, 3\nv_lshl_add_u32 {v(vXR)}, {v(vXG)}, 7, {v(vXR)}\n"
                f"s_lshl_b32 s49, s48, 14\ns_and_b32 s48, s2, 7\ns_lshl_b32 s48, s48, 10\ns_add_u32 s49, s49, s48\n"
                f"buffer_load_dword {v(vT2)}, {v(vXR)}, s[60:63], s49 offen"]
    if "stamp" in opt: A("s_memrealtime s[94:95]")
    stamp()
    for i in dma_chunk(0): A(i)
    A(f"s_lshl_b32 s48, {s(sW)}, 10\ns_add_u32 m0, s48, {2*SLOT}\n@tag c0\nbuffer_load_dwordx4 {v(vXG)}, s[20:23], s50 offen lds\n@tag")
    for k in range(4):
        for i in wdma(k): A(i)
    A.wait_tag("c0")
    A("s_barrier")
    stamp()
    LV = name + "_vpart"
    A(f"s_cmp_eq_u32 {s(sPART)}, 1"); A(f"s_cbranch_scc1 {LV}")
    st0 = A.state(); n0 = nst[0]
    for part in (0, 1):
        if part == 1:
            A.label(LV); A.set_state(st0); nst[0] = n0
        S = Stream(A, RING, 8, 6)
        nx = [0]
        started = set()
        for c, groups in enumerate(CHUNKS):
            if c < 4: order = [(sp, g) for sp in range(4) for g in range(4)]
            elif c < 6: order = [(sp, g) for gh in (0, 1) for sp in range(4) for g in (2 * gh, 2 * gh + 1)]
            else: order = [(sp, g) for g in range(4) for sp in range(4)]
            last_sp = None
            for (sp, g) in order:
                t, q = groups[g]; k = q * 4 + sp
                first = t not in started; started.add(t)
                for kt in range(2):
                    newaddr = sp != last_sp; last_sp = sp
                    if newaddr: nx[0] ^= 1
                    ra = vRA[nx[0]]
                    sl = c % NSLOT
                    xc = sp * 64 + (65536 if sl >= 2 else 0)
                    off = (sl % 2) * SLOT + g * 8192 + kt * 4096
                    def rd(b, newaddr=newaddr, ra=ra, xc=xc, off=off):
                        o = []
                        if newaddr: o.append(f"v_xor_b32 {v(ra)}, {xc}, {v(vRD)}")
                        o.append(f"ds_read_b128 {v(b,4)}, {v(ra)} offset:{off}")
                        return o
                    def mf(b, t=t, k=k, kt=kt, first=first):
                        o = []
                        for nt in range(2):
                            acc = ACC + 16 * ACCSET[t] + (8 * kt + 4 * nt if part == 0 else 8 * nt + 4 * kt)
                            cc = "0" if first else v(acc, 4)
                            w = v(W + 8 * k + 4 * nt, 4)
                            if part == 0: o.append(f"{MF} {v(acc,4)}, {w}, {v(b,4)}, {cc}")
                            else: o.append(f"{MF} {v(acc,4)}, {v(b,4)}, {w}, {cc}")
                        return "\n".join(o)
                    post = []
                    if c < 4:
                        if g == 0 and kt == 0 and k + 1 < 16: post = wtrans(k + 1)
                        if g == 2 and kt == 0 and k + 4 < 16: post = wdma(k + 4)
                    S.add(rd, mf, post=post)
        fl_st = " sc1" if "sc1" in opt else (" nt" if "nt" in opt else (" sc0 sc1" if "sc01" in opt else ""))
        def pack(t, dst):
            acc = ACC + 16 * ACCSET[t]
            return [f"v_cvt_pk_bf16_f32 {v(dst+i)}, {v(acc+2*i)}, {v(acc+2*i+1)}" for i in range(8)]
        def store(t, src):
            if "nostore" in opt: return []
            return [f"s_add_u32 s51, {s(sOUT)}, {t * 8192}\nbuffer_store_dwordx4 {v(src,4)}, {v(vL16)}, s[16:19], s51 offen" + fl_st,
                    f"s_add_u32 s51, {s(sOUT)}, {t * 8192}\nbuffer_store_dwordx4 {v(src+4,4)}, {v(vL16)}, s[16:19], s51 offen offset:1024" + fl_st]
        S2 = ACC + 32; S3 = ACC + 48
        for i in wtrans(0): A(i)
        for c in range(8):
            pre = []; fl = []; fl0 = []
            if c == 0:
                fl0 = [f"ds_read_b128 {v(XFR,4)}, {v(vXR)}"] + dma_chunk(1)
                fl = [f"buffer_store_dwordx4 {v(XFR,4)}, {v(vL16)}, s[16:19], {s(sXO)} offen sc1"]
            if c == 4:
                pre = pack(0, OST) + pack(2, S2) + pack(3, S2 + 8) + pack(1, S3 + 8)
                fl = store(0, OST) + store(2, S2)
            if c == 5:
                fl = store(3, S2 + 8) + store(1, S3 + 8)
                fl0 = [f"s_lshl_b32 s48, {s(sW)}, 10\ns_add_u32 m0, s48, {WSCR + 8192}\n@tag c6\nbuffer_load_dwordx4 {v(vUG)}, s[44:47], s55 offen lds\n@tag"]
            if c == 6:
                fl0 = pack(4, OST) + pack(5, ACC + 8)
                fl = store(4, OST) + store(5, ACC + 8)
            if c == 7:
                fl0 = pack(6, OST) + [f"ds_read_b64_tr_b16 {v(XFR,2)}, {v(vUR)}", f"ds_read_b64_tr_b16 {v(XFR+2,2)}, {v(vUR)} offset:512"]
                fl = store(6, OST) + [f"buffer_store_dwordx4 {v(XFR,4)}, {v(vUS)}, s[16:19], s58 offen"]
            for i in pre: A(i)
            S.run(2)
            S.run(6, fl0)
            S.run(18, fl)
            if c < 7:
                A.wait_tag(f"c{c+1}"); A("s_barrier")
                fl = dma_chunk(c + 2) if c + 2 < 8 else []
                if c == 6 and "nopf" not in opt: fl = fl + prefetch()
                S.run(6, fl)
            else:
                S.run(6)
            stamp()
        for i in pack(7, ACC) + store(7, ACC): A(i)
        if "stamp" in opt: A("s_waitcnt vmcnt(0)")
        stamp()
        dump_stamps()
        A("s_endpgm")
    A.label(Ldone); A.clear_state()
    A("s_endpgm")
    return descriptor(name, 256, 100)
```

```python
from common import *
import struct

SLOT = 32768
CTRL = 4 * SLOT
K2_LDS = 4 * SLOT + 2048
MF = "v_mfma_f32_16x16x32_bf16"
def f32hex(x): return hex(struct.unpack("<I", struct.pack("<f", x))[0])
CSCALE = 1.4426950408889634 * (128 ** -0.5)

def gen_k2(A, name="k2_kernel", opt=()):
    kernel_header(A, name)
    LA = 8
    for o_ in opt:
        if o_.startswith("la"): LA = int(o_[2:])
    PUBP = 2
    for o_ in opt:
        if o_.startswith("pub"): PUBP = int(o_[3:])
    def RB(b): return (192 + 4 * b) if b < 8 else (96 + 4 * (b - 8))
    QF = 0; SB = 32; PB = 64; CI = 80; XTRA = 96; X = 0
    O = 128; RING = 192
    vL16 = 224; vKV = 225; vWA = [226, 227]; vWT = 228; vDW = [229, 230]; vTQ = 231; vNEG = 232; vT = 233; vT2 = 234
    vL = [235, 236]; vPW = 237; vT4 = 238
    vM = [239, 240]; vF = [241, 242]; vT3 = 243
    ONES = 244; LACC = 248
    vPR = 226; vPQ = 227; vPV = 228
    vPR = 239; vPQ = 240; vPV = 241
    vM = [242, 243]; vF = [229, 230]; vT3 = 238; vT4 = 234
    sW = 24; sH = 25; sN = 26; sU = 27; sT = 28; sTL = 29; sSRC = 30; sLO = 31; sCNT = 32; sM0 = 33; sSLOT = 34; sTMP = 35
    sXO = 36; sCTX = 37; sR32 = 38; sC = 39; sWQ = 44; sKB = 45; sFAIL = 46; sLC = 56; sDS = 57; sDV = 58; sDM = 59
    L = lambda x: f"{name}_{x}"
    def Sreg(buf, qt, kt): return SB + 16 * buf + 8 * qt + 4 * kt
    def Preg(buf, qt): return PB + 8 * buf + 4 * qt
    def CIreg(qt, kt): return CI + 8 * qt + 4 * kt
    def Oreg(qt, dt): return O + 32 * qt + 4 * dt
    def Qreg(qt, j): return QF + 16 * qt + 4 * j
    def Xreg(qt, s_): return X + 64 * qt + 4 * s_
    ST = Stamps(A, "stamp" in opt, 66)
    tail_blocks = []

    A("s_cmp_ge_u32 s2, 256"); A(f"s_cbranch_scc1 {L('done')}")
    A(f"s_load_dwordx2 s[4:5], s[0:1], {ARG['wq']}")
    A(f"s_load_dwordx2 s[6:7], s[0:1], {ARG['ws']}")
    A(f"s_load_dwordx2 s[12:13], s[0:1], {ARG['wo']}")
    vLn = 235
    A(f"v_lshrrev_b32 {v(vT)}, 6, v0")
    A(f"v_and_b32 {v(vLn)}, 63, v0")
    A(f"v_readfirstlane_b32 {s(sW)}, {v(vT)}")
    A(f"v_lshlrev_b32 {v(vL16)}, 4, {v(vLn)}")
    A("s_and_b32 s40, s2, 7"); A("s_lshr_b32 s41, s2, 3"); A("s_and_b32 s42, s41, 3"); A("s_lshl_b32 s40, s40, 2"); A(f"s_add_u32 {s(sH)}, s40, s42")
    A("s_lshr_b32 s41, s41, 2")
    A(f"s_and_b32 s42, {s(sW)}, 3"); A("s_sub_u32 s43, 15, s41"); A("s_sub_u32 s47, 3, s42")
    A(f"s_cmp_lt_u32 {s(sW)}, 4"); A("s_cselect_b32 s43, s43, s41"); A("s_cselect_b32 s42, s42, s47")
    A("s_lshl_b32 s43, s43, 2"); A(f"s_add_u32 {s(sR32)}, s43, s42")
    A(f"s_add_u32 {s(sN)}, {s(sR32)}, 1")
    A("s_lshl_b32 s43, s41, 1"); A(f"s_sub_u32 {s(sCNT)}, 32, s43"); A(f"s_add_u32 {s(sTL)}, {s(sCNT)}, 4")
    A(f"s_lshl_b32 {s(sKB)}, {s(sH)}, 19")
    A(f"s_and_b32 s42, {s(sW)}, 3"); A("s_lshl_b32 s42, s42, 12"); A(f"s_add_u32 {s(sSRC)}, {s(sKB)}, s42")
    A(f"s_lshr_b32 {s(sLO)}, {s(sW)}, 2")
    A(f"s_mul_i32 s42, {s(sLO)}, {VF_OFF - 16384}"); A(f"s_add_u32 {s(sSRC)}, {s(sSRC)}, s42")
    A(f"s_lshl_b32 {s(sM0)}, {s(sW)}, 12")
    A(f"s_lshl_b32 {s(sXO)}, {s(sR32)}, 13"); A(f"s_add_u32 {s(sXO)}, {s(sXO)}, {XF_OFF}")
    A(f"s_lshl_b32 {s(sCTX)}, {s(sR32)}, 11"); A(f"s_add_u32 {s(sCTX)}, {s(sCTX)}, {s(sKB)}"); A(f"s_add_u32 {s(sCTX)}, {s(sCTX)}, {CTX_OFF}")
    A(f"s_mov_b32 {s(sC)}, {f32hex(CSCALE)}")
    A(f"s_mov_b32 {s(sDS)}, {s(sSRC)}"); A(f"s_sub_u32 {s(sDV)}, 0, {s(sLO)}"); A(f"s_mov_b32 {s(sDM)}, 0")
    A(f"v_lshrrev_b32 {v(vT)}, 4, {v(vLn)}"); A(f"v_and_b32 {v(vT3)}, 15, {v(vLn)}")
    A(f"v_lshlrev_b32 {v(vT4)}, 1, {v(vT)}"); A(f"v_xor_b32 {v(vT3)}, {v(vT3)}, {v(vT4)}"); A(f"v_lshlrev_b32 {v(vT3)}, 4, {v(vT3)}")
    A(f"v_lshl_add_u32 {v(vDW[0])}, {v(vT)}, 13, {v(vT3)}")
    A(f"v_xor_b32 {v(vDW[1])}, 128, {v(vDW[0])}")
    A(f"s_lshl_b32 {s(sWQ)}, {s(sH)}, 8"); A(f"s_lshl_b32 s42, {s(sW)}, 17"); A(f"s_add_u32 {s(sWQ)}, {s(sWQ)}, s42")
    A(f"v_lshrrev_b32 {v(vT)}, 4, {v(vLn)}"); A(f"v_lshlrev_b32 {v(vWT)}, 11, {v(vT)}")
    A(f"v_bfe_u32 {v(vT)}, {v(vLn)}, 2, 2"); A(f"v_lshl_add_u32 {v(vWT)}, {v(vT)}, 8, {v(vWT)}"); A(f"v_lshl_add_u32 {v(vWT)}, {v(vT)}, 5, {v(vWT)}")
    A(f"v_bfe_u32 {v(vT)}, {v(vLn)}, 4, 1"); A(f"v_lshl_add_u32 {v(vWT)}, {v(vT)}, 7, {v(vWT)}")
    A(f"v_and_b32 {v(vT)}, 3, {v(vLn)}"); A(f"v_lshl_add_u32 {v(vWT)}, {v(vT)}, 3, {v(vWT)}")
    A(f"v_and_b32 {v(vT)}, 15, {v(vLn)}"); A(f"v_lshrrev_b32 {v(vT3)}, 4, {v(vLn)}"); A(f"v_lshlrev_b32 {v(vT3)}, 2, {v(vT3)}"); A(f"v_sub_u32 {v(vTQ)}, {v(vT)}, {v(vT3)}")
    A(f"v_mov_b32 {v(vNEG)}, {f32hex(-1e30)}")
    A(f"s_lshl_b32 s42, {s(sW)}, 8"); A(f"s_add_u32 s42, s42, {CTRL}"); A(f"v_lshl_add_u32 {v(vPW)}, {v(vLn)}, 2, s42")
    A(f"v_and_b32 {v(vT)}, 7, {v(vLn)}"); A(f"v_mul_u32_u24 {v(vPR)}, 260, {v(vT)}"); A(f"v_add_u32 {v(vPR)}, {CTRL}, {v(vPR)}")
    A(f"v_mov_b32 {v(vPV)}, -1"); A(f"ds_write_b32 {v(vPW)}, {v(vPV)}")
    A(f"s_mov_b32 {s(sT)}, 0"); A(f"s_mov_b32 {s(sFAIL)}, 0")
    A("s_waitcnt lgkmcnt(0)")
    mk_srd(A, 8, 4, 512 * 8192)
    mk_srd(A, 16, 6, WS_BYTES)
    A(f"s_mov_b32 s14, {hex(4096*1024)}"); A("s_mov_b32 s15, 0x00020000")

    def dma_wq(T):
        out = []
        if "now" in opt and T > 0: return out
        for jj in range(4):
            out.append(f"s_add_u32 m0, {s(sM0)}, {(T % 4) * SLOT}\ns_add_u32 {s(sTMP)}, {s(sWQ)}, {T * 128 * 8192 + jj * (32768 - 1024)}\n"
                       f"@tag T{T}\nbuffer_load_dwordx4 {v(vDW[jj >> 1])}, s[8:11], {s(sTMP)} offen offset:{1024*jj} lds\n@tag")
        return out
    def dma_kv(tag=None):
        tg = f"@tag {tag}\n" if tag else ""; te = "\n@tag" if tag else ""
        g = [f"s_cmp_lt_u32 {s(sDV)}, {s(sCNT)}\ns_cselect_b32 s47, {s(sDS)}, 0x7ff00000\ns_add_u32 m0, {s(sDM)}, {s(sM0)}" + ("\ns_mov_b32 s47, 0x7ff00000" if "nodma" in opt else "")]
        fin = [f"s_add_u32 {s(sDS)}, {s(sDS)}, 16384", f"s_add_u32 {s(sDV)}, {s(sDV)}, 1", f"s_add_u32 {s(sDM)}, {s(sDM)}, {SLOT}", f"s_and_b32 {s(sDM)}, {s(sDM)}, {3*SLOT}"]
        for jj in range(4):
            g.append(f"{tg}buffer_load_dwordx4 {v(vL16)}, s[16:19], s47 offen offset:{1024*jj} lds{te}\n{fin[jj]}")
        return g
    def xload(T):
        out = []
        if "nox" in opt and T > 0: return out
        for qt in range(2):
            for ss in range(4):
                out.append(f"s_add_u32 s48, {s(sXO)}, {qt * 4096 + T * 524288}\nbuffer_load_dwordx4 {v(Xreg(qt, 4*T+ss),4)}, {v(vL16)}, s[16:19], s48 offen offset:{1024*ss}")
        return out
    def pub(): return f"v_mov_b32 {v(vPV)}, {s(sT)}\nds_write_b32 {v(vPW)}, {v(vPV)}"
    def pollrd(): return f"ds_read_b32 {v(vPQ)}, {v(vPR)}"
    def check():
        sp = A.newlabel(L("spin")); bk = A.newlabel(L("back"))
        A(f"v_cmp_gt_i32 vcc, {s(sT)}, {v(vPQ)}"); A(f"s_cbranch_vccnz {sp}")
        A.label(bk)
        A(f"s_add_u32 {s(sT)}, {s(sT)}, 1")
        tail_blocks.append((sp, bk))

    ST.start()
    if "stamp" in opt: A("s_mov_b32 s60, 0")
    for i in dma_wq(0) + xload(0) + dma_wq(1): A(i)
    A.wait_tag("T0"); A("s_barrier")
    ST.stamp()
    S = Stream(A, RING, 8, 5)
    nx = [0]
    for T in range(4):
        for dt in range(8):
            for ks in range(4):
                newaddr = ks == 0
                if newaddr: nx[0] ^= 1
                ra = vWA[nx[0]]
                xc = dt * 32 + (65536 if T >= 2 else 0)
                off = (T % 2) * SLOT + ks * 8192
                def rd(b, newaddr=newaddr, ra=ra, xc=xc, off=off):
                    o = []
                    if newaddr: o.append(f"v_xor_b32 {v(ra)}, {xc}, {v(vWT)}")
                    o.append(f"ds_read_b64_tr_b16 {v(b,2)}, {v(ra)} offset:{off}")
                    o.append(f"ds_read_b64_tr_b16 {v(b+2,2)}, {v(ra)} offset:{off+1024}")
                    return o
                def mf(b, T=T, dt=dt, ks=ks):
                    o = []
                    for qt in range(2):
                        acc = Oreg(qt, dt)
                        cc = "0" if (T == 0 and ks == 0) else v(acc, 4)
                        o.append(f"{MF} {v(acc,4)}, {v(b,4)}, {v(Xreg(qt, 4*T+ks),4)}, {cc}")
                    return "\n".join(o)
                S.add(rd, mf)
    early = {0: xload(1) + dma_wq(2) + xload(2)[:4], 1: xload(2)[4:] + xload(3), 2: [], 3: []}
    for T in range(4):
        S.run(14, early[T][:12])
        A.wait_tag(f"T{T+1}"); A(pub())
        S.run(8, early[T][12:])
        A(pollrd())
        S.run(4)
        check()
        S.run(6, dma_wq(3) if T == 0 else dma_kv(f"T{T+3}"))
    ST.stamp()
    A(f"v_mov_b32 {v(vKV)}, {v(vL16)}")
    A(f"s_mov_b32 {s(sSLOT)}, 0")
    if "prio" in opt:
        lb = A.newlabel(L("prio")); A(f"s_cmp_ge_u32 {s(sW)}, 4"); A(f"s_cbranch_scc1 {lb}"); A("s_setprio 1"); A.label(lb)
    def kread(b, f, half): return f"ds_read_b128 {v(RB(b),4)}, {v(vKV)} offset:{half*8192 + f*1024}"
    def vread(b, f, half): return f"ds_read_b128 {v(RB(b),4)}, {v(vKV)} offset:{16384 + half*8192 + f*1024}"
    def pread(p, half): return kread(p, p, half) if p < 8 else vread(p, p - 8, half)
    for f in range(LA): A(pread(f, 0))
    for i in range(16): A(f"v_mov_b32 {v(CI+i)}, 0")
    for qt in range(2):
        for dt in range(8):
            for e in range(4): A(f"v_mul_f32 {v(Oreg(qt,dt)+e)}, {s(sC)}, {v(Oreg(qt,dt)+e)}")
        for i in range(16):
            A(f"v_cvt_pk_bf16_f32 {v(QF+16*qt+i)}, {v(O+32*qt+2*i)}, {v(O+32*qt+2*i+1)}")
    zero_fill = [f"v_mov_b32 {v(O+i)}, 0" for i in range(64)] + [f"v_mov_b32 {v(LACC+i)}, 0" for i in range(8)] + \
                [f"v_mov_b32 {v(ONES+i)}, 0x3f803f80" for i in range(4)]

    def apply_mask():
        k = 0
        for qt in range(2):
            for kt in range(2):
                for e in range(4):
                    r = CIreg(qt, kt) + e
                    if kt < qt: continue
                    if kt > qt: A(f"v_mov_b32 {v(r)}, {v(vNEG)}"); continue
                    sp = 48 + 2 * (k % 4); k += 1
                    A(f"v_cmp_gt_i32 {s(sp,2)}, {e}, {v(vTQ)}")
                    A(f"v_cndmask_b32 {v(r)}, {v(r)}, {v(vNEG)}, {s(sp,2)}")
    def mask_if(x):
        lab = A.newlabel(L("nomask"))
        A(f"s_cmp_lg_u32 {s(sN)}, {x}"); A(f"s_cbranch_scc1 {lab}")
        apply_mask()
        A.label(lab)
    def canon():
        A.lq = [frozenset(regs_of(v(RB(f), 4))) for f in range(LA)]
        A.vq = []
    slot_adv = f"s_add_u32 {s(sSLOT)}, {s(sSLOT)}, {SLOT}\ns_and_b32 {s(sSLOT)}, {s(sSLOT)}, {3*SLOT}\nv_add_u32 {v(vKV)}, {s(sSLOT)}, {v(vL16)}"

    def body(par, qk, sm, pv, extra=()):
        half = 0 if par == 1 else 1
        sb_w = (par + 1) & 1; sb_r = par; pb_r = (par + 1) & 1
        extra = list(extra)
        uses = []
        if qk:
            for f in range(8):
                j, kt = f >> 1, f & 1
                mfs = []
                for qt in range(2):
                    d = Sreg(sb_w, qt, kt); c = v(CIreg(qt, kt), 4) if j == 0 else v(d, 4)
                    mfs.append(f"{MF} {v(d,4)}, {v(RB(f),4)}, {v(Qreg(qt,j),4)}, {c}")
                uses.append((f, mfs))
        if pv:
            for dt in range(8):
                mfs = []
                for qt in range(2):
                    d = Oreg(qt, dt)
                    mfs.append(f"{MF} {v(d,4)}, {v(RB(8+dt),4)}, {v(Preg(pb_r,qt),4)}, {v(d,4)}")
                uses.append((8 + dt, mfs))
        nu = len(uses); full = nu == 16
        own = [p for (p, _) in uses if p >= LA]
        nxt = list(range(LA))
        exps, cvts = [], []
        if sm:
            for qt in range(2):
                for i in range(8):
                    r = Sreg(sb_r, qt, 0) + i
                    exps.append(f"v_exp_f32 {v(r)}, {v(r)}")
                for i in range(4):
                    r = Sreg(sb_r, qt, 0) + 2 * i
                    cvts.append(f"v_cvt_pk_bf16_f32 {v(Preg(sb_r,qt)+i)}, {v(r)}, {v(r+1)}")
        msum = [f"{MF} {v(LACC+4*qt,4)}, {v(ONES,4)}, {v(Preg(pb_r,qt),4)}, {v(LACC+4*qt,4)}" for qt in range(2)] if pv else []
        per = 16 // nu
        ei = ci = 0
        dma = dma_kv() if par == 0 else []
        nex = len(extra)
        if not full:
            while own: A(pread(own.pop(0), half))
            if par == 1: A("s_waitcnt vmcnt(4)"); A(pub())
            else: A(pollrd())
        pchk = 16 - LA
        if full and par == 0 and pchk - 4 < 0: A(pollrd())
        for idx, (p, mfs) in enumerate(uses):
            if idx % 2 == 0: A.wait_regs(regs_of(v(RB(uses[idx + 1][0]), 4)))
            A(mfs[0])
            for _ in range(per):
                if ei < len(exps): A(exps[ei]); ei += 1
            A(mfs[1])
            if full:
                if par == 0 and p == pchk:
                    check(); A(slot_adv)
                if own: A(pread(own.pop(0), half))
                else: A(pread(nxt.pop(0), 1 - half))
                if par == 0 and p == pchk - 4: A(pollrd())
                if par == 1 and p == PUBP: A("s_waitcnt vmcnt(4)"); A(pub())
            while ci < len(cvts) and 2 * ci + 1 < ei - 1: A(cvts[ci]); ci += 1
            if full and dma and p >= pchk + 1 and (p - pchk) % 2 == 1: A(dma.pop(0))
            if msum and idx in (nu - 7, nu - 3): A(msum.pop(0))
            for _ in range((nex + nu - 1) // nu):
                if extra: A(extra.pop(0))
        while ci < len(cvts): A(cvts[ci]); ci += 1
        if not full:
            if par == 0:
                check(); A(slot_adv)
            while nxt: A(pread(nxt.pop(0), 1 - half))
        while dma: A(dma.pop(0))
        A.vq = []
    def finish_step():
        A(pollrd()); check()
        for i in dma_kv(): A(i)
        A.vq = []

    def xlane(op, r, t):
        A(f"v_mov_b32 {v(t)}, {v(r)}"); A(f"v_permlane32_swap_b32 {v(r)}, {v(t)}"); A(f"{op} {v(r)}, {v(r)}, {v(t)}")
        A(f"v_mov_b32 {v(t)}, {v(r)}"); A(f"v_permlane16_swap_b32 {v(r)}, {v(t)}"); A(f"{op} {v(r)}, {v(r)}, {v(t)}")
    def rowmax(buf, qt, dst):
        r = Sreg(buf, qt, 0)
        A(f"v_max3_f32 {v(dst)}, {v(r)}, {v(r+1)}, {v(r+2)}")
        A(f"v_max3_f32 {v(dst)}, {v(dst)}, {v(r+3)}, {v(r+4)}")
        A(f"v_max3_f32 {v(dst)}, {v(dst)}, {v(r+5)}, {v(r+6)}")
        A(f"v_max_f32 {v(dst)}, {v(dst)}, {v(r+7)}")
        xlane("v_max_f32", dst, vT)

    mask_if(1)
    body(1, True, False, False, zero_fill[:40])
    for qt in range(2):
        rowmax(0, qt, vM[qt])
        for i in range(8): A(f"v_sub_f32 {v(CIreg(qt,0)+i)}, 0, {v(vM[qt])}")
    for qt in range(2):
        for i in range(8): A(f"v_sub_f32 {v(Sreg(0,qt,0)+i)}, {v(Sreg(0,qt,0)+i)}, {v(vM[qt])}")
    mask_if(2)
    body(0, True, True, False, zero_fill[40:])
    A(f"s_cmp_eq_u32 {s(sN)}, 1"); A(f"s_cbranch_scc1 {L('Hodd')}")
    A(f"s_max_u32 {s(sLC)}, {s(sN)}, 3"); A(f"s_sub_u32 {s(sLC)}, {s(sLC)}, 3"); A(f"s_lshr_b32 {s(sLC)}, {s(sLC)}, 1")
    A(f"s_lshl_b32 {s(sU)}, {s(sLC)}, 1"); A(f"s_add_u32 {s(sU)}, {s(sU)}, 2")
    ST.stamp()
    A(f"s_cmp_eq_u32 {s(sLC)}, 0"); A(f"s_cbranch_scc1 {L('gen')}")
    A.raw(".p2align 6")
    A.label(L("main")); canon()
    body(1, True, True, True)
    body(0, True, True, True)
    A(f"s_sub_u32 {s(sLC)}, {s(sLC)}, 1"); A(f"s_cmp_lg_u32 {s(sLC)}, 0"); A(f"s_cbranch_scc1 {L('main')}")
    A.label(L("gen")); canon()
    A(f"s_cmp_eq_u32 {s(sU)}, {s(sN)}"); A(f"s_cbranch_scc1 {L('Godd')}")
    A(f"s_add_u32 {s(sU)}, {s(sU)}, 1")
    mask_if(s(sU))
    body(1, True, True, True)
    A(f"s_cmp_eq_u32 {s(sU)}, {s(sN)}"); A(f"s_cbranch_scc1 {L('Geven')}")
    A(f"s_add_u32 {s(sU)}, {s(sU)}, 1")
    mask_if(s(sU))
    body(0, True, True, True)
    A(f"s_branch {L('gen')}")
    A.label(L("Godd")); canon()
    body(1, False, True, True)
    body(0, False, False, True)
    A(f"s_branch {L('epi')}")
    A.label(L("Geven")); canon()
    body(0, False, True, True)
    A.label(L("Hodd")); canon()
    body(1, False, False, True)
    finish_step()
    A.label(L("epi")); canon()
    ST.stamp()
    if "stamp" in opt: A("s_mov_b32 s61, s60")

    def epilogue(check_):
        if check_:
            lr = [LACC, LACC + 4]
            thr = f32hex(2.0 ** 60) if "forceslow" not in opt else f32hex(-1.0)
            A(f"v_mov_b32 {v(vT)}, {thr}")
            A(f"v_cmp_nlt_f32 s[48:49], {v(lr[0])}, {v(vT)}"); A(f"v_cmp_nlt_f32 s[50:51], {v(lr[1])}, {v(vT)}")
            A("s_or_b64 s[48:49], s[48:49], s[50:51]"); A("s_cmp_lg_u64 s[48:49], 0")
            A(f"s_cselect_b32 {s(sFAIL)}, 1, 0"); A(f"s_cbranch_scc1 {L('idle')}")
        else:
            lr = vL
            for qt in range(2): xlane("v_add_f32", vL[qt], vT)
        for qt in range(2):
            A(f"v_rcp_f32 {v(vF[qt])}, {v(lr[qt])}")
        for qt in range(2):
            for i in range(32): A(f"v_mul_f32 {v(O+32*qt+i)}, {v(vF[qt])}, {v(O+32*qt+i)}")
            for i in range(16): A(f"v_cvt_pk_bf16_f32 {v(SB+16*qt+i)}, {v(O+32*qt+2*i)}, {v(O+32*qt+2*i+1)}")
            for j in range(4):
                A(f"s_add_u32 s48, {s(sCTX)}, {j * 131072}")
                A(f"buffer_store_dwordx4 {v(SB+16*qt+4*j,4)}, {v(vL16)}, s[16:19], s48 offen offset:{1024*qt}")
    A("s_waitcnt vmcnt(4)"); A(pub())
    epilogue(True)
    A.label(L("idle")); canon()
    A(f"s_add_u32 s42, {s(sT)}, 3"); A(f"s_cmp_gt_u32 s42, {s(sTL)}"); A(f"s_cbranch_scc1 {L('fin')}")
    A("s_waitcnt vmcnt(4)"); A(pub())
    finish_step()
    A(f"s_branch {L('idle')}")
    A.label(L("fin")); canon()
    A("s_waitcnt vmcnt(0)")
    A(f"v_mov_b32 {v(vPV)}, 0x7fffffff"); A(f"ds_write_b32 {v(vPW)}, {v(vPV)}")
    A("s_waitcnt lgkmcnt(0)")
    if "stamp" in opt:
        A("s_mov_b32 s78, s61"); A("s_mov_b32 s80, s60")
    ST.dump(16, sW, 8, 129 * MB, vT, vT2, 48, extra=2)
    A(f"s_cmp_eq_u32 {s(sFAIL)}, 0"); A(f"s_cbranch_scc1 {L('done')}")
    for i in range(64): A(f"v_mov_b32 {v(O+i)}, 0")
    for i in range(16): A(f"v_mov_b32 {v(CI+i)}, 0")
    for r in vL: A(f"v_mov_b32 {v(r)}, 0")
    for qt in range(2): A(f"v_mov_b32 {v(vM[qt])}, {v(vNEG)}")
    A(f"s_mov_b32 {s(sU)}, 1"); A(f"s_mov_b32 s47, {s(sKB)}")
    A.label(L("slow")); A.clear_state()
    A(f"s_add_u32 s43, s47, 4096"); A(f"s_add_u32 s42, s47, {VF_OFF}"); A(f"s_add_u32 s41, s42, 4096")
    for f in range(8):
        A(f"buffer_load_dwordx4 {v(RING+4*f,4)}, {v(vL16)}, s[16:19], {'s47' if f < 4 else 's43'} offen offset:{1024*(f&3)}")
    for f in range(8):
        A(f"buffer_load_dwordx4 {v(XTRA+4*f,4)}, {v(vL16)}, s[16:19], {'s42' if f < 4 else 's41'} offen offset:{1024*(f&3)}")
    mask_if(s(sU))
    for f in range(8):
        j, kt = f >> 1, f & 1
        for qt in range(2):
            d = Sreg(0, qt, kt); c = v(CIreg(qt, kt), 4) if j == 0 else v(d, 4)
            A(f"{MF} {v(d,4)}, {v(RING+4*f,4)}, {v(Qreg(qt,j),4)}, {c}")
    for qt in range(2):
        rowmax(0, qt, vT3)
        A(f"v_max_f32 {v(vT3)}, {v(vT3)}, {v(vM[qt])}")
        A(f"v_sub_f32 {v(vF[qt])}, {v(vM[qt])}, {v(vT3)}"); A(f"v_exp_f32 {v(vF[qt])}, {v(vF[qt])}")
        A(f"v_mov_b32 {v(vM[qt])}, {v(vT3)}")
        A(f"v_mul_f32 {v(vL[qt])}, {v(vF[qt])}, {v(vL[qt])}")
        for i in range(8):
            r = Sreg(0, qt, 0) + i
            A(f"v_sub_f32 {v(r)}, {v(r)}, {v(vT3)}"); A(f"v_exp_f32 {v(r)}, {v(r)}")
        for i in range(8): A(f"v_add_f32 {v(vL[qt])}, {v(Sreg(0,qt,0)+i)}, {v(vL[qt])}")
        for i in range(4): A(f"v_cvt_pk_bf16_f32 {v(Preg(0,qt)+i)}, {v(Sreg(0,qt,0)+2*i)}, {v(Sreg(0,qt,0)+2*i+1)}")
        for i in range(32): A(f"v_mul_f32 {v(O+32*qt+i)}, {v(vF[qt])}, {v(O+32*qt+i)}")
    for dt in range(8):
        for qt in range(2):
            d = Oreg(qt, dt)
            A(f"{MF} {v(d,4)}, {v(XTRA+4*dt,4)}, {v(Preg(0,qt),4)}, {v(d,4)}")
    A(f"s_add_u32 s47, s47, 8192"); A(f"s_add_u32 {s(sU)}, {s(sU)}, 1")
    A(f"s_cmp_le_u32 {s(sU)}, {s(sN)}"); A(f"s_cbranch_scc1 {L('slow')}")
    epilogue(False)
    A.label(L("done")); A.clear_state()
    A("s_endpgm")
    for sp, bk in tail_blocks:
        A.label(sp); A.clear_state()
        if "stamp" in opt: A("s_add_u32 s60, s60, 1")
        A("s_sleep 4"); A(pollrd()); A("s_waitcnt lgkmcnt(0)")
        A(f"v_cmp_gt_i32 vcc, {s(sT)}, {v(vPQ)}"); A(f"s_cbranch_vccnz {sp}"); A(f"s_branch {bk}")
    return descriptor(name, 256, 100)
```

```python
from common import *
import struct, math

GRID = 512
BLOCK = 256
K3_LDS = 65536
MF = "v_mfma_f32_16x16x32_bf16"
def f32hex(x): return hex(struct.unpack("<I", struct.pack("<f", x))[0])

def gen_outproj(A, name, opt):
    D = 4
    ACC = 0
    CX = 64
    WF = 128
    vL16 = 160; vWD = 161; vWR = [162, 163, 164, 165]; vT = 166; vT2 = 167; vT3 = 168; vRW = 169; vRR = 170; vST = 171
    sW = 24; sCX = 25; sWO = 26; sM0 = 27; sK = 28; sTMP = 29; sQ = 30; sMT = 31
    A(f"s_load_dwordx2 s[4:5], s[0:1], {ARG['wo']}")
    A(f"s_load_dwordx2 s[6:7], s[0:1], {ARG['ws']}")
    A(f"s_load_dwordx2 s[40:41], s[0:1], {ARG['out']}")
    A(f"v_lshrrev_b32 {v(vT)}, 6, v0"); A(f"v_and_b32 {v(vT2)}, 63, v0")
    A(f"v_readfirstlane_b32 {s(sW)}, {v(vT)}")
    A(f"v_lshlrev_b32 {v(vL16)}, 4, {v(vT2)}")
    if "map84" in opt:
        A("s_and_b32 s42, s3, 7"); A("s_lshr_b32 s43, s3, 3"); A("s_and_b32 s44, s43, 7"); A("s_lshr_b32 s45, s42, 1"); A("s_lshl_b32 s45, s45, 3"); A(f"s_add_u32 {s(sQ)}, s45, s44")
        A("s_and_b32 s42, s42, 1"); A("s_lshl_b32 s42, s42, 2"); A("s_lshr_b32 s43, s43, 3"); A(f"s_add_u32 {s(sMT)}, s42, s43")
    else:
        A("s_and_b32 s42, s3, 7"); A("s_lshr_b32 s43, s3, 3"); A("s_and_b32 s44, s43, 3"); A("s_lshl_b32 s42, s42, 2"); A(f"s_add_u32 {s(sQ)}, s42, s44")
        A(f"s_lshr_b32 {s(sMT)}, s43, 2")
    A(f"s_lshl_b32 {s(sCX)}, {s(sQ)}, 12"); A(f"s_lshl_b32 s42, {s(sW)}, 22"); A(f"s_add_u32 {s(sCX)}, {s(sCX)}, s42"); A(f"s_add_u32 {s(sCX)}, {s(sCX)}, {CTX_OFF}")
    A(f"s_lshl_b32 {s(sWO)}, {s(sW)}, 20"); A(f"s_lshl_b32 s42, {s(sMT)}, 7"); A(f"s_add_u32 {s(sWO)}, {s(sWO)}, s42")
    A(f"s_lshl_b32 {s(sM0)}, {s(sW)}, 14")
    A(f"v_lshrrev_b32 {v(vT)}, 3, {v(vT2)}"); A(f"v_lshlrev_b32 {v(vWD)}, 10, {v(vT)}")
    A(f"v_lshrrev_b32 {v(vT)}, 4, {v(vT2)}"); A(f"v_lshlrev_b32 {v(vT)}, 1, {v(vT)}"); A(f"v_and_b32 {v(vT3)}, 7, {v(vT2)}"); A(f"v_xor_b32 {v(vT)}, {v(vT)}, {v(vT3)}")
    A(f"v_lshl_add_u32 {v(vWD)}, {v(vT)}, 4, {v(vWD)}")
    A(f"v_lshrrev_b32 {v(vT)}, 2, {v(vT2)}"); A(f"v_lshlrev_b32 {v(vWR[0])}, 7, {v(vT)}")
    A(f"v_bfe_u32 {v(vT)}, {v(vT2)}, 3, 2"); A(f"v_lshl_add_u32 {v(vWR[0])}, {v(vT)}, 5, {v(vWR[0])}")
    A(f"v_and_b32 {v(vT)}, 3, {v(vT2)}"); A(f"v_lshl_add_u32 {v(vWR[0])}, {v(vT)}, 3, {v(vWR[0])}")
    A(f"v_add_u32 {v(vWR[0])}, {s(sM0)}, {v(vWR[0])}")
    for mt in range(1, 4): A(f"v_xor_b32 {v(vWR[mt])}, {32*mt}, {v(vWR[0])}")
    A(f"v_add_u32 {v(vRW)}, {s(sM0)}, {v(vL16)}")
    A(f"v_bfe_u32 {v(vT)}, {v(vT2)}, 1, 2"); A(f"v_lshlrev_b32 {v(vRR)}, 10, {v(vT)}")
    A(f"v_and_b32 {v(vT)}, 1, {v(vT2)}"); A(f"v_lshl_add_u32 {v(vRR)}, {v(vT)}, 9, {v(vRR)}")
    A(f"v_lshrrev_b32 {v(vT)}, 3, {v(vT2)}"); A(f"v_lshl_add_u32 {v(vRR)}, {v(vT)}, 4, {v(vRR)}")
    A(f"s_lshl_b32 s42, {s(sW)}, 12"); A(f"v_add_u32 {v(vRR)}, s42, {v(vRR)}")
    A(f"v_lshlrev_b32 {v(vST)}, 11, {v(vT)}"); A(f"v_and_b32 {v(vT)}, 7, {v(vT2)}"); A(f"v_lshl_add_u32 {v(vST)}, {v(vT)}, 4, {v(vST)}")
    A("s_waitcnt lgkmcnt(0)")
    mk_srd(A, 8, 4, 4096 * 1024); mk_srd(A, 16, 6, WS_BYTES); mk_srd(A, 20, 40, 2048 * 2048)
    def loads(k):
        out = []
        sl = k % D
        for jj in range(4):
            out.append(f"s_add_u32 m0, {s(sM0)}, {sl*4096}\ns_add_u32 {s(sTMP)}, {s(sWO)}, {k*32768 + jj*(8192-1024)}\n@tag w{k}\n"
                       f"buffer_load_dwordx4 {v(vWD)}, s[8:11], {s(sTMP)} offen offset:{1024*jj} lds\n@tag")
        for qt in range(4):
            out.append(f"s_add_u32 {s(sTMP)}, {s(sCX)}, {k*131072}\nbuffer_load_dwordx4 {v(CX+16*sl+4*qt,4)}, {v(vL16)}, s[16:19], {s(sTMP)} offen offset:{1024*qt}")
        return out
    def wreads(k):
        out = [f"@waittag w{k}"]
        for mt in range(4):
            for t in range(2):
                out.append(f"ds_read_b64_tr_b16 {v(WF+16*(k%2)+4*mt+2*t,2)}, {v(vWR[mt])} offset:{(k%D)*4096 + t*2048}")
        return out
    NK = 32
    ST = Stamps(A, "stamp" in opt, 70)
    ST.start()
    for k in range(D):
        for i in loads(k): A(i)
    for i in wreads(0): A(i)
    for k in range(NK):
        if k in (1, 4, 8, 16, 24): ST.stamp()
        mf = []
        for qt in range(4):
            for mt in range(4):
                acc = ACC + 16 * qt + 4 * mt
                c = "0" if k == 0 else v(acc, 4)
                mf.append(f"{MF} {v(acc,4)}, {v(WF+16*(k%2)+4*mt,4)}, {v(CX+16*(k%D)+4*qt,4)}, {c}")
        for i in mf[:4]: A(i)
        if k + 1 < NK:
            for i in wreads(k + 1): A(i)
        ld = loads(k + D) if k + D < NK else []
        for j, i in enumerate(mf[4:]):
            A(i)
            if j in (1, 3, 5, 7) and ld: A(ld[(j - 1) // 2])
            if j in (3, 7, 11) and ld: A(ld[4 + (j - 3) // 4])
        if ld: A(ld[7])
    ST.stamp()
    A("s_barrier")
    for t in range(16):
        A(f"ds_write_b128 {v(vRW)}, {v(ACC+4*t,4)} offset:{t*1024}")
    A("s_waitcnt lgkmcnt(0)"); A("s_barrier")
    R = 64
    A(f"s_lshl_b32 s42, {s(sQ)}, 17"); A(f"s_lshl_b32 s43, {s(sW)}, 15"); A("s_add_u32 s42, s42, s43"); A(f"s_lshl_b32 s43, {s(sMT)}, 7"); A("s_add_u32 s42, s42, s43"); A("s_add_u32 s42, s42, 1024")
    for i in range(2):
        for sw in range(4):
            for h in range(2):
                A(f"ds_read_b128 {v(R+32*i+8*sw+4*h,4)}, {v(vRR)} offset:{sw*16384 + i*128 + h*256}")
    for i in range(2):
        b = R + 32 * i
        for e in range(8):
            A(f"v_add_f32 {v(b+e)}, {v(b+e)}, {v(b+8+e)}"); A(f"v_add_f32 {v(b+16+e)}, {v(b+16+e)}, {v(b+24+e)}")
        for e in range(8): A(f"v_add_f32 {v(b+e)}, {v(b+e)}, {v(b+16+e)}")
        for e in range(4): A(f"v_cvt_pk_bf16_f32 {v(b+8+e)}, {v(b+2*e)}, {v(b+2*e+1)}")
        if i: A("s_add_u32 s42, s42, 16384")
        A(f"buffer_store_dwordx4 {v(b+8,4)}, {v(vST)}, s[20:23], s42 offen")
    ST.dump(16, sW, 4, 130 * MB, vT, vT2)
    A("s_endpgm")

def gen_k3(A, name="k3_kernel", opt=()):
    kernel_header(A, name)
    L = lambda x: f"{name}_{x}"
    A("s_cmp_ge_u32 s2, 512"); A(f"s_cbranch_scc1 {L('done')}")
    A("s_lshr_b32 s4, s2, 3"); A("s_and_b32 s5, s4, 1"); A("s_lshr_b32 s6, s4, 5"); A("s_xor_b32 s5, s5, s6")
    A("s_lshr_b32 s4, s4, 1"); A("s_lshl_b32 s4, s4, 3"); A("s_and_b32 s3, s2, 7"); A("s_add_u32 s3, s3, s4")
    A("s_cmp_eq_u32 s5, 1"); A(f"s_cbranch_scc1 {L('ssm')}")
    gen_outproj(A, name, opt)
    A.label(L("ssm")); A.clear_state()
    try:
        import ssm
        ssm.gen_ssm(A, name, opt)
    except ImportError:
        pass
    A.label(L("done")); A.clear_state()
    A("s_endpgm")
    return descriptor(name, 176, 100)
```

```python
from common import *
import struct, math
MF = "v_mfma_f32_16x16x32_bf16"
MF32 = "v_mfma_f32_16x16x4_f32"
def f32hex(x): return hex(struct.unpack("<I", struct.pack("<f", x))[0])
def f32(x): return struct.unpack("<f", struct.pack("<f", x))[0]
L2E = 1.4426950408889634
L2E_HI = f32(L2E); L2E_LO = L2E - L2E_HI
TREG = 8704
UOFF = 4 * TREG; USZ = 4160
KOFF = UOFF + 4 * USZ; KSZ = 4608
ROWB = 528

def gen_ssm(A, name, opt):
    U = 160
    vLane = 168; vT = 169; vT2 = 170; vT3 = 171; vTid = 172; vD = 173; vD1 = 174; vT4 = 175
    sW = 44; sD0 = 45; sD = 46; sTB = 47
    A(f"s_load_dwordx8 s[48:55], s[0:1], 0")
    A(f"s_load_dwordx4 s[56:59], s[0:1], 32")
    A(f"s_load_dwordx2 s[60:61], s[0:1], 48")
    A(f"s_load_dwordx2 s[62:63], s[0:1], {ARG['out']}")
    A(f"s_load_dwordx2 s[64:65], s[0:1], {ARG['ws']}")
    A(f"v_mov_b32 {v(vTid)}, v0")
    A(f"v_lshrrev_b32 {v(vT)}, 6, v0"); A(f"v_and_b32 {v(vLane)}, 63, v0")
    A(f"v_readfirstlane_b32 {s(sW)}, {v(vT)}")
    A("s_and_b32 s4, s3, 7"); A("s_lshr_b32 s5, s3, 3"); A("s_lshl_b32 s4, s4, 6"); A("s_lshl_b32 s5, s5, 1"); A(f"s_add_u32 {s(sD0)}, s4, s5")
    A(f"s_lshr_b32 s4, {s(sW)}, 1"); A(f"s_add_u32 {s(sD)}, {s(sD0)}, s4")
    A(f"s_mul_i32 {s(sTB)}, {s(sW)}, {TREG}")
    A("s_waitcnt lgkmcnt(0)")
    mk_srd(A, 40, 64, WS_BYTES)
    mk_srd(A, 12, 50, 512 * 256); mk_srd(A, 16, 52, 512 * 256); mk_srd(A, 20, 54, 512 * 256); mk_srd(A, 24, 56, 512 * 256)
    mk_srd(A, 28, 58, 1024); mk_srd(A, 32, 60, 1024); mk_srd(A, 36, 62, 2048 * 2048)
    ST = Stamps(A, "stamp" in opt, 74)
    ST.start()
    pLA, pAI, pCR, pCI, pDT = 0, 1, 2, 3, 4
    A(f"v_lshlrev_b32 {v(vT)}, 1, {v(vTid)}"); A(f"s_lshl_b32 s4, {s(sD0)}, 8")
    for r, sd in ((pLA, 12), (pAI, 16), (pCR, 20), (pCI, 24)):
        A(f"buffer_load_ushort {v(r)}, {v(vT)}, {s(sd,4)}, s4 offen")
    A(f"v_mov_b32 {v(vT2)}, 0"); A(f"s_lshl_b32 s5, {s(sD)}, 1"); A(f"s_lshl_b32 s6, {s(sD0)}, 1")
    A(f"buffer_load_ushort {v(pDT)}, {v(vT2)}, s[28:31], s5 offen")
    A(f"buffer_load_dword {v(vD)}, {v(vT2)}, s[32:35], s6 offen")
    A(f"v_lshlrev_b32 {v(vT3)}, 4, {v(vLane)}")
    A(f"s_lshl_b32 s6, {s(sD)}, 12"); A(f"s_and_b32 s7, {s(sW)}, 1"); A("s_lshl_b32 s7, s7, 11"); A("s_add_u32 s6, s6, s7"); A(f"s_add_u32 s6, s6, {UT_OFF}")
    A(f"s_lshr_b32 s4, {s(sW)}, 1"); A(f"s_mul_i32 s4, s4, {2*USZ}"); A("s_add_u32 s4, s4, s7"); A(f"s_add_u32 m0, s4, {UOFF + 32}")
    A(f"buffer_load_dwordx4 {v(vT3)}, s[40:43], s6 offen lds")
    A(f"buffer_load_dwordx4 {v(vT3)}, s[40:43], s6 offen offset:1024 lds")
    A(f"s_add_u32 m0, s4, {UOFF + USZ + 32}"); A("s_sub_u32 s6, s6, 2")
    A(f"buffer_load_dwordx4 {v(vT3)}, s[40:43], s6 offen lds")
    A(f"buffer_load_dwordx4 {v(vT3)}, s[40:43], s6 offen offset:1024 lds")
    Z = 8
    for i in range(4): A(f"v_mov_b32 {v(Z+i)}, 0")
    A(f"s_lshr_b32 s4, {s(sW)}, 1"); A(f"s_mul_i32 s5, s4, {KSZ}"); A(f"s_add_u32 s5, s5, {KOFF + 4096}"); A(f"s_mul_i32 s7, s4, {2*USZ}"); A(f"s_add_u32 s7, s7, {UOFF}")
    A(f"v_and_b32 {v(vT)}, 31, {v(vLane)}"); A(f"v_lshlrev_b32 {v(vT)}, 4, {v(vT)}"); A(f"v_add_u32 {v(vT)}, s5, {v(vT)}")
    A(f"ds_write_b128 {v(vT)}, {v(Z,4)}")
    A(f"v_and_b32 {v(vT)}, 1, {v(vLane)}"); A(f"v_lshlrev_b32 {v(vT)}, 4, {v(vT)}"); A(f"v_add_u32 {v(vT)}, s7, {v(vT)}")
    A(f"ds_write_b128 {v(vT)}, {v(Z,4)}"); A(f"ds_write_b128 {v(vT)}, {v(Z,4)} offset:{USZ}")
    A(f"v_mov_b32 {v(vD1)}, s7")
    def pexp(dst, x, t1, t2):
        A(f"v_mul_f32 {v(t1)}, {f32hex(L2E_HI)}, {v(x)}")
        A(f"v_mov_b32 {v(t2)}, {f32hex(L2E_HI)}")
        A(f"v_fma_f32 {v(t2)}, {v(x)}, {v(t2)}, -{v(t1)}")
        A(f"v_fmac_f32 {v(t2)}, {f32hex(L2E_LO)}, {v(x)}")
        A(f"v_exp_f32 {v(t1)}, {v(t1)}")
        A(f"v_mul_f32 {v(t2)}, {f32hex(math.log(2.0))}, {v(t2)}")
        A(f"v_fma_f32 {v(t1)}, {v(t1)}, {v(t2)}, {v(t1)}")
        A(f"v_cvt_pk_bf16_f32 {v(t1)}, {v(t1)}, {v(t1)}")
        A(f"v_lshlrev_b32 {v(dst)}, 16, {v(t1)}")
    for r in (pLA, pAI, pCR, pCI, pDT): A(f"v_lshlrev_b32 {v(r)}, 16, {v(r)}")
    pexp(pDT, pDT, vT, vT2); pexp(pLA, pLA, vT, vT2)
    AR, AI, CR, CI_ = 0, 1, 2, 3
    A(f"v_mul_f32 {v(AR)}, {v(pLA)}, {v(pDT)}"); A(f"v_mul_f32 {v(AR)}, {f32hex(-L2E)}, {v(AR)}")
    A(f"v_mul_f32 {v(AI)}, {v(pAI)}, {v(pDT)}"); A(f"v_mul_f32 {v(AI)}, {f32hex(1.0/(2*math.pi))}, {v(AI)}")
    A(f"v_mul_f32 {v(CR)}, {v(pCR)}, {v(pDT)}"); A(f"v_add_f32 {v(CR)}, {v(CR)}, {v(CR)}")
    A(f"v_mul_f32 {v(CI_)}, {v(pCI)}, {v(pDT)}"); A(f"v_add_f32 {v(CI_)}, {v(CI_)}, {v(CI_)}")
    ST.stamp()
    vOW = 5; vOR = 6
    A(f"v_lshlrev_b32 {v(vOW)}, 3, {v(vLane)}"); A(f"v_add_u32 {v(vOW)}, {s(sTB)}, {v(vOW)}")
    A(f"v_and_b32 {v(vT)}, 15, {v(vLane)}"); A(f"v_mul_u32_u24 {v(vOR)}, {ROWB}, {v(vT)}")
    A(f"v_lshrrev_b32 {v(vT)}, 4, {v(vLane)}"); A(f"v_lshl_add_u32 {v(vOR)}, {v(vT)}, 4, {v(vOR)}"); A(f"v_add_u32 {v(vOR)}, {s(sTB)}, {v(vOR)}")
    WB = 32; XA = 64; KACC = 96
    TMP = 112
    cnt = [0]
    def cexp_row(p, row, withc):
        b = TMP + 8 * (cnt[0] % 4); cnt[0] += 1
        m, ph, c_, s_, re, im = b, b + 1, b + 2, b + 3, b + 4, b + 5
        o = [f"v_mul_f32 {v(m)}, {f32hex(float(p))}, {v(AR)}", f"v_mul_f32 {v(ph)}, {f32hex(float(p))}, {v(AI)}",
             f"v_exp_f32 {v(m)}, {v(m)}", f"v_fract_f32 {v(ph)}, {v(ph)}",
             f"v_cos_f32 {v(c_)}, {v(ph)}", f"v_sin_f32 {v(s_)}, {v(ph)}"]
        if not withc:
            o += [f"v_mul_f32 {v(re)}, {v(m)}, {v(c_)}", f"v_mul_f32 {v(im)}, {v(m)}, {v(s_)}"]
        else:
            o += [f"v_mul_f32 {v(re)}, {v(CR)}, {v(c_)}", f"v_mul_f32 {v(im)}, {v(CR)}, {v(s_)}",
                  f"v_fma_f32 {v(re)}, -{v(CI_)}, {v(s_)}, {v(re)}", f"v_fma_f32 {v(im)}, {v(CI_)}, {v(c_)}, {v(im)}",
                  f"v_mul_f32 {v(re)}, {v(m)}, {v(re)}", f"v_mul_f32 {v(im)}, -{v(m)}, {v(im)}"]
        o.append(f"ds_write_b64 {v(vOW)}, {v(re,2)} offset:{row*ROWB}")
        return o
    def zip2(a_, b_):
        o = []
        for i in range(max(len(a_), len(b_))):
            if i < len(a_): o.append(a_[i])
            if i < len(b_): o.append(b_[i])
        return o
    def rows_code(ps, withc):
        o = []
        for i in range(0, len(ps), 2):
            x = cexp_row(ps[i], i, withc)
            if i + 1 < len(ps): x = zip2(x, cexp_row(ps[i + 1], i + 1, withc))
            o += x
        return o
    t0 = [128 * (g >> 1) + (g & 1) + 2 * e for g in range(4) for e in range(4)]
    t1 = [b + 128 * e for b in (512, 516, 1024, 1536) for e in range(4)]
    t2 = [b + 2 * e for b in (256, 384) for e in range(4)] + [2048]
    for i in rows_code([8 * j for j in range(16)], False): A(i)
    for s_ in range(8): A(f"ds_read_b128 {v(WB+4*s_,4)}, {v(vOR)} offset:{64*s_}")
    for i in rows_code(t0, True): A(i)
    ST.stamp()
    tiles = [t0, t1, t2]
    for t in range(3):
        for s_ in range(8): A(f"ds_read_b128 {v(XA+4*s_,4)}, {v(vOR)} offset:{64*s_}")
        mf = []
        for k in range(32):
            acc = KACC + 4 * t
            mf.append(f"{MF32} {v(acc,4)}, {v(XA+k)}, {v(WB+k)}, {'0' if k == 0 else v(acc,4)}")
        nxt = rows_code(tiles[t + 1], True) if t < 2 else []
        per = (len(nxt) + 31) // 32; fi = 0
        for k in range(32):
            A(mf[k])
            for _ in range(per):
                if fi < len(nxt): A(nxt[fi]); fi += 1
    ST.stamp()
    vK = 7
    A(f"v_and_b32 {v(vT)}, 15, {v(vLane)}"); A(f"v_lshlrev_b32 {v(vT)}, 5, {v(vT)}"); A(f"v_add_u32 {v(vT)}, {s(sTB)}, {v(vT)}")
    A(f"v_lshrrev_b32 {v(vT2)}, 5, {v(vLane)}"); A(f"v_bfe_u32 {v(vT3)}, {v(vLane)}, 4, 1")
    A(f"v_lshl_add_u32 {v(vK)}, {v(vT2)}, 9, {v(vT)}"); A(f"v_lshl_add_u32 {v(vK)}, {v(vT3)}, 2, {v(vK)}")
    for e in range(4): A(f"ds_write_b32 {v(vK)}, {v(KACC+e)} offset:{8*e}")
    A(f"v_mul_u32_u24 {v(vT4)}, 7, {v(vT2)}"); A(f"v_add_u32 {v(vT4)}, 4, {v(vT4)}")
    A(f"v_lshlrev_b32 {v(vT4)}, {v(vT4)}, {v(vT3)}")
    A(f"v_lshl_add_u32 {v(vK)}, {v(vT2)}, 11, {v(vT)}"); A(f"v_add_u32 {v(vK)}, {v(vK)}, {v(vT4)}")
    for e in range(4): A(f"ds_write_b32 {v(vK)}, {v(KACC+4+e)} offset:{2048 + 512*e}")
    A(f"v_mul_u32_u24 {v(vK)}, {1792*4}, {v(vT2)}"); A(f"v_lshl_add_u32 {v(vK)}, {v(vT3)}, 9, {v(vK)}"); A(f"v_add_u32 {v(vK)}, {v(vK)}, {v(vT)}")
    A("s_mov_b32 exec_hi, 0xffff")
    for e in range(4): A(f"ds_write_b32 {v(vK)}, {v(KACC+8+e)} offset:{1024 + 8*e}")
    A("s_mov_b32 exec_hi, -1")
    A("s_waitcnt vmcnt(0) lgkmcnt(0)"); A("s_barrier")
    A(f"v_mov_b32 {v(vT)}, 0"); A(f"ds_write_b16 {v(vD1)}, {v(vT)} offset:{USZ + 32}")
    A(f"s_lshr_b32 s4, {s(sW)}, 1"); A(f"s_mul_i32 s5, s4, {2*TREG}"); A(f"s_mul_i32 s6, s4, {KSZ}"); A(f"s_add_u32 s6, s6, {KOFF}")
    A(f"v_and_b32 {v(vT)}, 127, {v(vTid)}"); A(f"v_lshlrev_b32 {v(vT2)}, 1, {v(vT)}")
    A(f"v_lshl_add_u32 {v(vT3)}, {v(vT)}, 2, s6")
    G = 32; PP = 8
    for i in range(8):
        for e in range(2):
            k = 2 * i + e
            A(f"v_sub_u32 {v(PP+k)}, {2047 - 256*i - e}, {v(vT2)}"); A(f"v_cvt_f32_u32 {v(PP+k)}, {v(PP+k)}")
    for k in range(0, 16, 2):
        A(f"v_cvt_pk_bf16_f32 {v(vT4)}, {v(PP+k)}, {v(PP+k+1)}")
        A(f"v_lshlrev_b32 {v(PP+k)}, 16, {v(vT4)}"); A(f"v_and_b32 {v(PP+k+1)}, 0xffff0000, {v(vT4)}")
    for k in range(16):
        A(f"v_cvt_u32_f32 {v(PP+k)}, {v(PP+k)}"); A(f"v_lshl_add_u32 {v(PP+k)}, {v(PP+k)}, 2, s5")
        A(f"ds_read2st64_b32 {v(G+2*k,2)}, {v(PP+k)} offset0:0 offset1:{TREG//256}")
    for k in range(16): A(f"v_add_f32 {v(G+2*k)}, {v(G+2*k)}, {v(G+2*k+1)}")
    for k in range(8): A(f"v_cvt_pk_bf16_f32 {v(PP+k)}, {v(G+4*k)}, {v(G+4*k+2)}")
    for k in range(8): A(f"ds_write_b32 {v(vT3)}, {v(PP+k)} offset:{512*k}")
    A("s_waitcnt lgkmcnt(0)"); A("s_barrier")
    ST.stamp()
    Y = 128; FA = [0, 64]
    vUA = [160, 161, 162, 163]; vKB = vT2
    A(f"s_and_b32 s7, {s(sW)}, 1"); A("s_lshl_b32 s7, s7, 8")
    A(f"s_mul_i32 s5, s4, {2*USZ}"); A(f"s_add_u32 s5, s5, {UOFF}"); A("s_add_u32 s5, s5, s7")
    A(f"s_add_u32 s6, s6, {2*2032 - 512*7}"); A("s_add_u32 s6, s6, s7")
    A(f"v_and_b32 {v(vT3)}, 15, {v(vLane)}"); A(f"v_lshrrev_b32 {v(vT4)}, 4, {v(vLane)}")
    A(f"v_add_u32 {v(vT)}, 2, {v(vT3)}"); A(f"v_and_b32 {v(vT)}, 0x1e, {v(vT)}"); A(f"v_lshlrev_b32 {v(vUA[0])}, 1, {v(vT)}")
    A(f"v_lshl_add_u32 {v(vUA[0])}, {v(vT4)}, 4, {v(vUA[0])}")
    A(f"v_and_b32 {v(vT)}, 1, {v(vT3)}"); A(f"v_xor_b32 {v(vT)}, 1, {v(vT)}"); A(f"v_mul_u32_u24 {v(vT)}, {USZ}, {v(vT)}")
    A(f"v_add3_u32 {v(vUA[0])}, {v(vUA[0])}, {v(vT)}, s5")
    for i in range(1, 4): A(f"v_add_u32 {v(vUA[i])}, {1024*i}, {v(vUA[0])}")
    A(f"v_lshlrev_b32 {v(vKB)}, 4, {v(vT4)}"); A(f"v_lshlrev_b32 {v(vT3)}, 5, {v(vT3)}"); A(f"v_sub_u32 {v(vKB)}, {v(vKB)}, {v(vT3)}"); A(f"v_add_u32 {v(vKB)}, s6, {v(vKB)}")
    def cloads(sg):
        b = FA[sg % 2]; o = []
        for n in range(8):
            d = (n & 1) * 128 + sg * 16
            o.append(f"ds_read2_b32 {v(b+4*n,2)}, {v(vUA[n>>1])} offset0:{d} offset1:{d+1}")
            o.append(f"ds_read2_b32 {v(b+4*n+2,2)}, {v(vUA[n>>1])} offset0:{d+2} offset1:{d+3}")
            o.append(f"ds_read_b128 {v(b+32+4*n,4)}, {v(vKB)} offset:{(7-n)*512 + sg*64}")
        return o
    for i in cloads(0): A(i)
    for sg in range(4):
        b = FA[sg % 2]
        mf = []
        for top in range(8):
            for n in range(top + 1):
                for mu in range(top + 1):
                    if max(n, mu) == top and n + mu <= 7:
                        i = n + mu
                        first = (sg == 0) and not any(m_[0] == i for m_ in mf)
                        mf.append((i, f"{MF} {v(Y+4*i,4)}, {v(b+4*n,4)}, {v(b+32+4*mu,4)}, {'0' if first else v(Y+4*i,4)}"))
        nxt = cloads(sg + 1) if sg < 3 else []
        fi = 0
        for k, (_, t_) in enumerate(mf):
            A(t_)
            if k >= 12 and fi < len(nxt): A(nxt[fi]); fi += 1
        while fi < len(nxt): A(nxt[fi]); fi += 1
    ST.stamp()
    A(f"v_and_b32 {v(vT3)}, 15, {v(vLane)}"); A(f"v_lshlrev_b32 {v(vT3)}, 6, {v(vT3)}"); A(f"v_lshl_add_u32 {v(vT3)}, {v(vT4)}, 4, {v(vT3)}"); A(f"v_add_u32 {v(vT3)}, {s(sTB)}, {v(vT3)}")
    for i in range(8): A(f"ds_write_b128 {v(vT3)}, {v(Y+4*i,4)} offset:{1024*i}")
    A("s_waitcnt lgkmcnt(0)"); A("s_barrier")
    A(f"v_lshlrev_b32 {v(vT)}, 2, {v(vTid)}")
    for i in range(8):
        A(f"ds_read2st64_b32 {v(4*i,2)}, {v(vT)} offset0:{4*i} offset1:{4*i + TREG//256}")
        A(f"ds_read2st64_b32 {v(4*i+2,2)}, {v(vT)} offset0:{4*i + 2*TREG//256} offset1:{4*i + 3*TREG//256}")
    A(f"v_lshlrev_b32 {v(vT2)}, 1, {v(vTid)}")
    for i in range(8):
        A(f"ds_read_u16 {v(64+2*i)}, {v(vT2)} offset:{UOFF + 32 + 512*i}")
        A(f"ds_read_u16 {v(65+2*i)}, {v(vT2)} offset:{UOFF + 2*USZ + 32 + 512*i}")
    A(f"v_and_b32 {v(vD1)}, 0xffff0000, {v(vD)}"); A(f"v_lshlrev_b32 {v(vD)}, 16, {v(vD)}")
    A(f"v_lshlrev_b32 {v(vT3)}, 11, {v(vTid)}"); A(f"s_lshl_b32 s6, {s(sD0)}, 1")
    for i in range(8):
        b = 4 * i; t = 32 + 4 * i
        A(f"v_add_f32 {v(b)}, {v(b)}, {v(b+1)}"); A(f"v_add_f32 {v(b+2)}, {v(b+2)}, {v(b+3)}")
        A(f"v_cvt_pk_bf16_f32 {v(b)}, {v(b)}, {v(b+2)}")
        A(f"v_lshlrev_b32 {v(t)}, 16, {v(64+2*i)}"); A(f"v_lshlrev_b32 {v(t+1)}, 16, {v(65+2*i)}")
        A(f"v_mul_f32 {v(t)}, {v(t)}, {v(vD)}"); A(f"v_mul_f32 {v(t+1)}, {v(t+1)}, {v(vD1)}")
        A(f"v_cvt_pk_bf16_f32 {v(t)}, {v(t)}, {v(t+1)}")
        A(f"v_lshlrev_b32 {v(b+1)}, 16, {v(b)}"); A(f"v_and_b32 {v(b+2)}, 0xffff0000, {v(b)}")
        A(f"v_lshlrev_b32 {v(t+1)}, 16, {v(t)}"); A(f"v_and_b32 {v(t+2)}, 0xffff0000, {v(t)}")
        A(f"v_add_f32 {v(b+1)}, {v(b+1)}, {v(t+1)}"); A(f"v_add_f32 {v(b+2)}, {v(b+2)}, {v(t+2)}")
        A(f"v_cvt_pk_bf16_f32 {v(b)}, {v(b+1)}, {v(b+2)}")
        if i: A(f"s_add_u32 s6, s6, {256*2048}")
        A(f"buffer_store_dword {v(b)}, {v(vT3)}, s[36:39], s6 offen")
    ST.stamp()
    ST.dump(40, sW, 4, 130 * MB, vT, vT2)
    A("s_endpgm")
```
